```python
import torch

def _softmax(x, axis=-1):
    return torch.softmax(x, dim=axis)

def _gelu(x):
    return torch.nn.functional.gelu(x, approximate='tanh')

def _silu(x):
    return torch.nn.functional.silu(x)

def _sigmoid(x):
    return torch.sigmoid(x)

def _layernorm(x, axis=-1, eps=1e-05):
    m = x.mean(dim=axis, keepdim=True)
    v = x.var(dim=axis, keepdim=True, unbiased=False)
    return (x - m) / torch.sqrt(v + eps)

def _scatter_add(tgt, idx, src, axis=0):
    return tgt.clone().index_add_(axis, idx, src)

def _segment_sum(src, seg, n):
    out = torch.zeros((n,) + src.shape[1:], dtype=src.dtype)
    return out.index_add_(0, seg, src)

def _pad(x, pw):
    flat = tuple((v for pair in reversed(pw) for v in pair))
    return torch.nn.functional.pad(x, flat)
kernel_name = 'concat_heads__memory_aug_recurrent_mem_tr__ssm_conv_s5__prompt'

def setup_inputs():

    _w = lambda a: (lambda t: t.to(torch.bfloat16) if t.is_floating_point() else t)(torch.as_tensor(a))

    def _A_setup():
        B, S, Dm = (1, 2048, 640)
        H, Dh = (32, 128)
        M, seg = (8, 32)
        seg = min(seg, S)
        S = S // seg * seg
        return {'x': _w((lambda *s: torch.randn(*s, dtype=torch.bfloat16) * 0.05)(B, S, Dm)), 'mem0': _w((lambda *s: torch.randn(*s, dtype=torch.bfloat16) * 0.8)(B, M, Dm)), 'Wq': _w((lambda *s: torch.randn(*s, dtype=torch.bfloat16) * 1.6)(Dm, H, Dh) * Dm ** (-0.5)), 'Wk': _w((lambda *s: torch.randn(*s, dtype=torch.bfloat16) * 1.6)(Dm, H, Dh) * Dm ** (-0.5)), 'Wv': _w((lambda *s: torch.randn(*s, dtype=torch.bfloat16) * 0.8)(Dm, H, Dh) * Dm ** (-0.5)), 'Wo': _w((lambda *s: torch.randn(*s, dtype=torch.bfloat16) * 0.8)(H, Dh, Dm) * (H * Dh) ** (-0.5)), 'seg_len': seg}
    _A_in = _A_setup()

    def _B_setup():
        B, S, D = (1, 2048, 640)
        P = D
        Lambda_re = -0.5 * (lambda _x: torch.exp(torch.as_tensor(_x)))((lambda *s: torch.randn(*s, dtype=torch.bfloat16) * 0.8)(P))
        Lambda_im = (lambda *s: torch.randn(*s, dtype=torch.bfloat16) * 0.8)(P) * 1.0
        B_re = (lambda *s: torch.randn(*s, dtype=torch.bfloat16) * 0.8)(P, D) * D ** (-0.5)
        B_im = (lambda *s: torch.randn(*s, dtype=torch.bfloat16) * 0.8)(P, D) * D ** (-0.5)
        C_re = (lambda *s: torch.randn(*s, dtype=torch.bfloat16) * 0.8)(D, P) * P ** (-0.5)
        C_im = (lambda *s: torch.randn(*s, dtype=torch.bfloat16) * 0.8)(D, P) * P ** (-0.5)
        log_dt = (lambda *s: torch.randn(*s, dtype=torch.bfloat16) * 0.8)(P) * 0.3 - 2.0
        Dskip = (lambda *s: torch.randn(*s, dtype=torch.bfloat16) * 0.8)(D)
        return {'x': _w((lambda *s: torch.randn(*s, dtype=torch.bfloat16) * 0.05)(B, S, D)), 'Lambda_re': _w(Lambda_re), 'Lambda_im': _w(Lambda_im), 'B_re': _w(B_re), 'B_im': _w(B_im), 'C_re': _w(C_re), 'C_im': _w(C_im), 'log_dt': _w(log_dt), 'Dskip': _w(Dskip)}
    _B_in = _B_setup()
    return {'A_x': _A_in['x'], 'A_mem0': _A_in['mem0'], 'A_Wq': _A_in['Wq'], 'A_Wk': _A_in['Wk'], 'A_Wv': _A_in['Wv'], 'A_Wo': _A_in['Wo'], 'A_seg_len': _A_in['seg_len'], 'B_x': _B_in['x'], 'B_Lambda_re': _B_in['Lambda_re'], 'B_Lambda_im': _B_in['Lambda_im'], 'B_B_re': _B_in['B_re'], 'B_B_im': _B_in['B_im'], 'B_C_re': _B_in['C_re'], 'B_C_im': _B_in['C_im'], 'B_log_dt': _B_in['log_dt'], 'B_Dskip': _B_in['Dskip']}

def reference(A_x, A_mem0, A_Wq, A_Wk, A_Wv, A_Wo, A_seg_len, B_x, B_Lambda_re, B_Lambda_im, B_B_re, B_B_im, B_C_re, B_C_im, B_log_dt, B_Dskip):

    def _A_ref(x, mem0, Wq, Wk, Wv, Wo, seg_len):
        B, S, Dm = x.shape
        H, Dh = (Wq.shape[1], Wq.shape[2])
        M = mem0.shape[1]
        scale = Dh ** (-0.5)
        n_seg = S // seg_len
        L = M + seg_len
        idx = torch.arange(L)
        mask = (idx[:, None] < M) | (idx[:, None] >= idx[None, :])
        mem = mem0
        outs = []
        for s in range(n_seg):
            xs = x[:, s * seg_len:(s + 1) * seg_len, :].clone()
            h = torch.concatenate([mem, xs], axis=1)
            q = torch.einsum('btd,dhe->bhte', h, Wq)
            k = torch.einsum('btd,dhe->bhte', h, Wk)
            v = torch.einsum('btd,dhe->bhte', h, Wv)
            scores = torch.einsum('bhqe,bhke->bhqk', q, k) * scale
            scores = torch.where(mask[None, None], scores, -1000000000.0)
            p = _softmax(scores, axis=-1)
            o = torch.einsum('bhqk,bhke->bhqe', p, v)
            o = torch.einsum('bhte,hed->btd', o, Wo)
            mem = o[:, :M, :].clone()
            outs.append(o[:, M:, :])
        return torch.concatenate(outs, axis=1)

    def _B_ref(x, Lambda_re, Lambda_im, B_re, B_im, C_re, C_im, log_dt, Dskip):
        Bsz, L, H = x.shape
        Lam = Lambda_re + 1j * Lambda_im
        Bmat = B_re + 1j * B_im
        Cmat = C_re + 1j * C_im
        dt = torch.exp(log_dt)
        Lam_bar = torch.exp(dt * Lam)
        B_bar = ((Lam_bar - 1.0) / Lam)[:, None] * Bmat
        Bu = torch.einsum('bld,pd->blp', x + 0j, B_bar)
        h = torch.zeros_like(Bu[:, 0, :])
        hs = []
        for t in range(L):
            h = Lam_bar[None, :] * h + Bu[:, t, :]
            hs.append(h)
        hseq = torch.stack(hs, 1)
        y = 2.0 * torch.einsum('blp,dp->bld', hseq, Cmat).real + x * Dskip[None, None, :]
        return y
    a = _A_ref(A_x, A_mem0, A_Wq, A_Wk, A_Wv, A_Wo, A_seg_len)
    b = _B_ref(B_x, B_Lambda_re, B_Lambda_im, B_B_re, B_B_im, B_C_re, B_C_im, B_log_dt, B_Dskip)
    return torch.concatenate([a, b], axis=-1)
```

```python
import re

REG_RE = re.compile(r'^(-|\|)?(v|a|s)(\d+)\|?$')
RNG_RE = re.compile(r'^(-|\|)?(v|a|s)\[(\d+):(\d+)\]\|?$')

def parse_reg(tok):
    t = tok.strip()
    t = t.replace('abs(', '').replace(')', '')
    t = t.strip('|')
    if t.startswith('-'): t = t[1:].strip('|')
    m = re.match(r'^(v|a|s)(\d+)$', t)
    if m: return {(m.group(1), int(m.group(2)))}
    m = re.match(r'^(v|a|s)\[(\d+):(\d+)\]$', t)
    if m: return {(m.group(1), i) for i in range(int(m.group(2)), int(m.group(3)) + 1)}
    if t == 'vcc': return {('s', 'vcc')}
    if t in ('vcc_lo', 'vcc_hi'): return {('s', 'vcc')}
    if t == 'exec' or t in ('exec_lo', 'exec_hi'): return {('s', 'exec')}
    if t == 'm0': return {('s', 'm0')}
    return set()

TRANS = ('v_exp_f32', 'v_log_f32', 'v_rcp_f32', 'v_rsq_f32', 'v_sqrt_f32', 'v_sin_f32', 'v_cos_f32', 'v_rcp_iflag_f32')

def mfma_passes(mn):
    if '32x32' in mn: return 8
    if '16x16x4_f32' in mn: return 8
    return 4

class Ins:
    __slots__ = ('text', 'mn', 'ops', 'kind', 'wr', 'rd', 'isA', 'isB', 'isC', 'passes', 'nop', 'dpp', 'label', 'target', 'storedata')
    def __init__(self, text):
        self.text = text
        self.label = None; self.target = None
        self.wr = set(); self.rd = set(); self.isA = set(); self.isB = set(); self.isC = set()
        self.passes = 0; self.nop = 0; self.dpp = False; self.storedata = set()
        t = text.split(';')[0].strip()
        if not t or t.startswith('.'):
            self.kind = 'none'; self.mn = ''; self.ops = []; return
        if t.endswith(':'):
            self.kind = 'label'; self.label = t[:-1]; self.mn = ''; self.ops = []; return
        parts = t.split(None, 1)
        mn = parts[0]; self.mn = mn
        rest = parts[1] if len(parts) > 1 else ''
        ops = []; cur = ''; depth = 0
        for ch in rest:
            if ch in '[(': depth += 1
            if ch in '])': depth -= 1
            if ch == ',' and depth == 0: ops.append(cur.strip()); cur = ''
            else: cur += ch
        if cur.strip(): ops.append(cur.strip())
        mods = ''
        if ops:
            last = ops[-1].split(None, 1)
            ops[-1] = last[0]
            if len(last) > 1: mods = last[1]
        self.ops = ops
        R = [parse_reg(o) for o in ops]
        base = mn.replace('_e32', '').replace('_e64', '').replace('_dpp', '').replace('_sdwa', '')
        if mn.startswith('v_mfma') or mn.startswith('v_smfmac'):
            self.kind = 'mfma'; self.passes = mfma_passes(mn)
            self.wr = R[0]; self.isA = R[1]; self.isB = R[2]
            if mn.startswith('v_smfmac'):
                self.isC = R[0]; self.rd = R[0] | R[1] | R[2] | R[3]; self.isA = R[1] | R[3]
            else:
                self.isC = R[3]; self.rd = R[1] | R[2] | R[3]
        elif mn.startswith('v_'):
            self.kind = 'trans' if base in TRANS else 'valu'
            self.dpp = ('_dpp' in mn) or ('row_' in mods) or ('quad_perm' in mods)
            if base.startswith('v_permlane'):
                self.kind = 'perml'; self.wr = R[0] | R[1]; self.rd = R[0] | R[1]
            elif base.startswith('v_cmp'):
                self.wr = R[0]; self.rd = set().union(*R[1:])
            elif base in ('v_readfirstlane_b32', 'v_readlane_b32'):
                self.kind = 'rdlane'; self.wr = R[0]; self.rd = set().union(*R[1:])
            elif base in ('v_add_co_u32', 'v_sub_co_u32', 'v_addc_co_u32', 'v_subb_co_u32', 'v_subrev_co_u32'):
                self.wr = R[0] | R[1]; self.rd = set().union(*R[2:])
            elif base in ('v_mad_u64_u32',):
                self.wr = R[0] | R[1]; self.rd = set().union(*R[2:])
            else:
                self.wr = R[0]; self.rd = set().union(*R[1:]) if len(R) > 1 else set()
                if base in ('v_fmac_f32', 'v_pk_fmac_f16', 'v_dot2c_f32_bf16', 'v_writelane_b32') or self.dpp:
                    self.rd |= R[0]
        elif mn.startswith('global_') or mn.startswith('buffer_') or mn.startswith('flat_'):
            self.kind = 'vmem'
            allr = set().union(*R) if R else set()
            if 'load_lds' in mn or (' lds' in (' ' + mods)):
                self.rd = allr | {('s', 'm0')}; self.kind = 'vmem_lds'
            elif '_load' in mn:
                self.wr = R[0]; self.rd = set().union(*R[1:])
            elif '_store' in mn:
                self.rd = allr
                data = R[1] if mn.startswith('global_') else R[0]
                if 'x3' in mn or 'x4' in mn: self.storedata = data
            elif 'atomic' in mn:
                if 'sc0' in mods.split():
                    self.wr = R[0]; self.rd = set().union(*R[1:])
                else: self.rd = allr
            elif mn in ('buffer_inv', 'buffer_wbl2'):
                pass
        elif mn.startswith('ds_'):
            self.kind = 'ds'
            if mn.startswith('ds_read') or mn.startswith('ds_bpermute') or mn.startswith('ds_permute') or mn.startswith('ds_swizzle'):
                self.wr = R[0]; self.rd = set().union(*R[1:])
            else:
                self.rd = set().union(*R)
        elif mn == 's_nop':
            self.kind = 'nop'; self.nop = int(ops[0], 0)
        elif mn.startswith('s_cbranch') or mn == 's_branch':
            self.kind = 'branch'; self.target = ops[0]
            if 'vcc' in mn: self.rd = {('s', 'vcc')}
            if 'exec' in mn: self.rd = {('s', 'exec')}
        elif mn.startswith('s_'):
            self.kind = 'salu'
            nodst = ('s_waitcnt', 's_barrier', 's_endpgm', 's_setprio', 's_sleep', 's_cmp', 's_bitcmp', 's_setreg', 's_sethalt', 's_cmpk')
            if any(mn.startswith(x) for x in nodst):
                self.rd = set().union(*R) if R else set()
            else:
                self.wr = R[0] if R else set(); self.rd = set().union(*R[1:]) if len(R) > 1 else set()
                if 'saveexec' in mn: self.wr |= {('s', 'exec')}; self.rd |= {('s', 'exec')}
        else:
            raise ValueError('cannot classify: ' + text)

    def states(self):
        if self.kind in ('none', 'label'): return 0
        if self.kind == 'nop': return self.nop + 1
        return 1

VALUish = ('valu', 'trans', 'perml', 'rdlane')
def isv(r): return r[0] in ('v', 'a')

def required(p, c):
    need = 0
    pv = p.kind in VALUish
    cv = c.kind in VALUish
    pw = p.wr
    if pv:
        vw = {r for r in pw if isv(r)}
        sw = {r for r in pw if r[0] == 's'}
        if vw:
            if c.kind == 'mfma' and (vw & c.rd): need = max(need, 2)
            if c.kind == 'perml' and (vw & c.rd): need = max(need, 2)
            if c.dpp and cv and (vw & c.rd): need = max(need, 2)
            if c.kind == 'rdlane' and (vw & c.rd): need = max(need, 1)
            if p.kind == 'trans' and cv and c.kind != 'trans' and (vw & c.rd): need = max(need, 1)
            if p.kind == 'trans' and c.kind == 'trans' and (vw & c.rd): need = max(need, 1)
        if sw:
            if cv and (sw & c.rd):
                need = max(need, 2)
                if c.kind == 'rdlane' and len(c.ops) > 2 and (sw & parse_reg(c.ops[2])): need = max(need, 4)
                if c.mn.startswith('v_writelane'): need = max(need, 4)
            if c.kind in ('vmem', 'vmem_lds') and (sw & c.rd): need = max(need, 5)
            if ('s', 'exec') in sw:
                if c.dpp: need = max(need, 5)
                if c.kind == 'mfma': need = max(need, 4)
                if c.kind in ('perml', 'rdlane'): need = max(need, 4)
    if p.kind == 'mfma':
        P = p.passes
        d = {4: (6, 8, 3), 8: (10, 12, 7), 2: (4, 5, 1), 16: (18, 20, 15)}[P]
        if c.kind == 'mfma':
            if pw & (c.isA | c.isB): need = max(need, d[1])
            if pw & c.isC:
                if not (pw == c.isC and c.passes == P): need = max(need, d[0])
            if (pw & c.wr) and not (pw & c.isC):
                need = max(need, d[0])
        elif cv or c.kind in ('vmem', 'vmem_lds', 'ds'):
            if pw & (c.rd | c.wr): need = max(need, d[1])
        if cv and (p.isC & c.wr): need = max(need, d[2])
        if c.kind in ('vmem', 'ds') and (p.isC & c.wr): need = max(need, d[2])
    if p.kind == 'vmem' and p.storedata:
        if cv and (p.storedata & c.wr): need = max(need, 2)
        elif (p.storedata & c.wr): need = max(need, 1)
    if p.kind == 'salu' and ('s', 'm0') in p.wr and c.kind == 'vmem_lds': need = max(need, 1)
    return need

LOOKBACK = 26

def _advance(t, last_mfma, ins):
    if ins.kind == 'mfma' and last_mfma is not None:
        t = max(t, last_mfma[0] + last_mfma[1] - 1)
    return t

def _need_nops(seq, c):
    t = 0; lm = None; times = []
    for x in seq:
        t = _advance(t, lm, x); times.append(t)
        if x.kind == 'mfma': lm = (t, x.passes)
        t += x.states()
    tc = _advance(t, lm, c)
    worst = 0
    for p, tp in zip(seq, times):
        r = required(p, c)
        if r:
            have = tc - tp - 1
            if p.kind == 'nop': continue
            if r > have:
                worst = max(worst, (tp + 1 + r) - t)
    return max(worst, 0)

def _window(lst):
    w = []
    tot = 0
    for p in reversed(lst):
        if p.kind in ('none', 'label'): continue
        if p.kind == 'branch' and p.mn == 's_branch': break
        if p.mn == 's_endpgm': break
        w.append(p); tot += p.states()
        if tot >= LOOKBACK: break
    w.reverse()
    return w

def _emit_nops(out, n):
    while n > 0:
        m = min(n, 16)
        out.append(Ins('    s_nop %d' % (m - 1))); n -= m

def fix_hazards(lines, verbose=False):
    ins = [Ins(l) for l in lines]
    inserted = 0
    for it in range(50):
        out = []
        for c in ins:
            if c.kind in ('none', 'label'):
                out.append(c); continue
            n = _need_nops(_window(out), c)
            if n: _emit_nops(out, n); inserted += n
            out.append(c)
        labels = {x.label: i for i, x in enumerate(out) if x.kind == 'label'}
        fix = None
        for i, b in enumerate(out):
            if b.kind != 'branch' or b.target not in labels: continue
            pre = []; tot = 0
            for p in reversed(out[:i + 1]):
                if p.kind in ('none', 'label'): continue
                if p is not b and p.kind == 'branch' and p.mn == 's_branch': break
                pre.append(p); tot += p.states()
                if tot >= LOOKBACK: break
            pre.reverse()
            li = labels[b.target]
            seq = list(pre); d0 = 0
            for j in range(li, len(out)):
                c = out[j]
                if c.kind in ('none', 'label'): continue
                n = _need_nops(seq, c)
                if n:
                    fix = (li, n, b.text.strip(), c.text.strip()); break
                seq.append(c); d0 += c.states()
                if (c.kind == 'branch' and c.mn == 's_branch') or c.mn == 's_endpgm' or d0 >= LOOKBACK: break
            if fix: break
        if not fix: break
        li, n, bt, ct = fix
        if verbose: print('branch-edge fix: %d nops after label for [%s] -> [%s]' % (n, bt, ct))
        pad = []; _emit_nops(pad, n); inserted += n
        ins = out[:li + 1] + pad + out[li + 1:]
    else:
        raise SystemExit('hazard fixing did not converge')
    if verbose: print('inserted wait states:', inserted)
    return [x.text for x in out]

class K:
    def __init__(self):
        self.L = []
        self.uid = 0
    def __call__(self, s):
        for line in s.split('\n'):
            if line.strip(): self.L.append('    ' + line.strip() if not line.strip().endswith(':') else line.strip())
    def label(self, n): self.L.append(n + ':')
    def new(self, p='L'):
        self.uid += 1; return '%s_%d' % (p, self.uid)
    def c(self, s): self.L.append('    ; ' + s)
    def text(self, verbose=False): return '\n'.join(fix_hazards(self.L, verbose))

def vr(b, n=1): return 'v%d' % b if n == 1 else 'v[%d:%d]' % (b, b + n - 1)
def ar(b, n=1): return 'a%d' % b if n == 1 else 'a[%d:%d]' % (b, b + n - 1)
def sr(b, n=1): return 's%d' % b if n == 1 else 's[%d:%d]' % (b, b + n - 1)
```

```python
from proj import *
from s1 import poll_flags

sBID = 38
sZ = 32; sHB = 34; sFB = 36
LOG2E = 1.4426950408889634

def b1_role(k, cfg):
    NSEG = 64
    k.label('L_b1')
    add64(k, sPFL, S_WS, FLAG_OFF)
    k(f"s_lshl_b32 s{sFB}, s{sBID}, 7\ns_add_u32 s{sFB}, s{sFB}, {F_BPROG}\ns_mov_b32 s30, 0")
    flag_store(k, sFB, 30)
    signal_init(k, pT0, pT1)
    x_setup(k, 'B_x')
    k(f"s_mov_b32 s31, {XBUF}")
    x_dma(k, 31)
    k(f"""s_load_dwordx2 s[10:11], s[0:1], {ARG['B_Bre']}
    s_load_dwordx2 s[12:13], s[0:1], {ARG['B_Bim']}
    v_and_b32 v16, 7, v0
    s_lshl_b32 s14, s{sBID}, 5
    s_lshl_b32 s15, s5, 3
    s_add_u32 s14, s14, s15
    v_add_u32 v16, s14, v16
    v_mul_u32_u24 v16, 1280, v16
    v_lshrrev_b32 v17, 4, v0
    v_lshl_add_u32 v16, v17, 4, v16
    v_bfe_u32 v17, v0, 3, 1
    v_cmp_eq_u32 vcc, 0, v17
    s_waitcnt lgkmcnt(0)
    v_mov_b32 v18, s10
    v_mov_b32 v19, s11
    v_mov_b32 v20, s12
    v_mov_b32 v21, s13
    v_cndmask_b32 v18, v20, v18, vcc
    v_cndmask_b32 v19, v21, v19, vcc
    v_add_co_u32 v18, vcc, v18, v16
    v_addc_co_u32 v19, vcc, 0, v19, vcc""")
    for kap in range(20):
        k(f"global_load_dwordx4 {ar(4*kap,4)}, v[18:19], off offset:{64*kap}")
    k(f"""v_bfe_u32 v16, v0, 3, 1
    v_lshlrev_b32 v16, 4, v16
    v_lshrrev_b32 v17, 4, v0
    v_lshl_add_u32 v16, v17, 2, v16
    v_lshlrev_b32 v{pST}, 7, v16
    v_and_b32 v17, 7, v0
    s_lshl_b32 s10, s5, 3
    v_add_u32 v17, s10, v17
    v_lshl_add_u32 v{pST}, v17, 2, v{pST}
    s_mul_i32 s10, s{sBID}, {2048*128}
    s_add_u32 s10, s10, {Z_OFF}""")
    add64s(k, sZ, S_WS, 10)
    k(f"s_mov_b32 s40, 0x00ff00ff\ns_mov_b32 s41, 0x00ff00ff")
    wait_init(k, cfg.get('total_init', 256), pT0, pT1, sPSPIN)
    k(f"s_mov_b32 s{sPS}, 0\ns_mov_b32 s{sPRD}, {XBUF}\nv_add_u32 v{pRE}, {XBUF}, v{pRB}\nv_add_u32 v{pRE+1}, {XBUF}, v{pRB+1}")
    k("s_waitcnt vmcnt(0)")
    def gemm(extra):
        def rd(kap):
            st = pFR + 8*(kap % 3); a = pRE + (kap & 1)
            return [f"ds_read_b128 {vr(st,4)}, v{a} offset:{(kap>>1)*1024}", f"ds_read_b128 {vr(st+4,4)}, v{a} offset:{20480 + (kap>>1)*1024}"]
        extra = list(extra)
        for x in rd(0) + rd(1): k(x)
        for kap in range(20):
            if kap + 2 < 20:
                for x in rd(kap+2): k(x)
            k(f"s_waitcnt lgkmcnt({2*min(2, 19-kap)})")
            st = pFR + 8*(kap % 3)
            for rho in range(2):
                acc = pACC + 4*rho
                c = '0' if kap == 0 else vr(acc,4)
                k(f"v_mfma_f32_16x16x32_bf16 {vr(acc,4)}, {vr(st+4*rho,4)}, {ar(4*kap,4)}, {c}")
            if (kap & 1) == 0 and extra: k(extra.pop(0))
        for x in extra: k(x)
    k.label('L_b1_loop')
    k("s_waitcnt vmcnt(4)\ns_barrier")
    l1 = k.new('L_b1nd'); l2 = k.new('L_b1j')
    k(f"s_add_u32 s30, s{sPS}, 1\ns_cmp_ge_u32 s30, {NSEG}\ns_cbranch_scc1 {l1}")
    add64(k, sPX, sPX, 32*1280)
    k(f"s_xor_b32 s31, s{sPRD}, {XBSZ}")
    x_dma_base(k, 31)
    gemm(x_dma_list(31))
    k(f"s_branch {l2}\n{l1}:")
    gemm([])
    k(f"{l2}:")
    for i in range(4):
        a0, a1 = pACC + i, pACC + 4 + i
        k(f"""v_cndmask_b32 v{pPK}, v{a0}, v{a1}, s[40:41]
        v_cndmask_b32 v{pPK+1}, v{a1}, v{a0}, s[40:41]
        v_mov_b32_dpp v{pPK+2}, v{pPK} row_ror:8 row_mask:0xf bank_mask:0xf
        v_cndmask_b32 v{pPK+3}, v{pPK+2}, v{pPK+1}, s[40:41]    ; re
        v_cndmask_b32 v{pPK+2}, v{pPK+1}, v{pPK+2}, s[40:41]    ; im
        v_cvt_pk_bf16_f32 v{pPK+4+i}, v{pPK+3}, v{pPK+2}""")
    for i in range(4):
        k(f"global_store_dword v{pST}, v{pPK+4+i}, s[{sZ}:{sZ+1}] offset:{128*i}")
    add64(k, sZ, sZ, 32*128)
    k(f"""s_xor_b32 s{sPRD}, s{sPRD}, {XBSZ}
    v_add_u32 v{pRE}, s{sPRD}, v{pRB}
    v_add_u32 v{pRE+1}, s{sPRD}, v{pRB+1}
    s_add_u32 s{sPS}, s{sPS}, 1
    s_cmp_lt_u32 s{sPS}, {NSEG}
    s_cbranch_scc1 L_b1_loop""")
    LR, LI, CR, CI, HR, HI = 16, 17, 18, 19, 20, 21
    ZB = 64
    k(f"""s_load_dwordx2 s[10:11], s[0:1], {ARG['B_Lre']}
    s_load_dwordx2 s[12:13], s[0:1], {ARG['B_Lim']}
    s_load_dwordx2 s[14:15], s[0:1], {ARG['B_ldt']}
    v_and_b32 v22, 31, v0
    s_lshl_b32 s30, s{sBID}, 5
    v_add_u32 v23, s30, v22
    v_lshlrev_b32 v23, 1, v23
    s_waitcnt lgkmcnt(0)
    global_load_ushort v24, v23, s[10:11]
    global_load_ushort v25, v23, s[12:13]
    global_load_ushort v26, v23, s[14:15]
    s_waitcnt vmcnt(0)
    s_barrier
    v_lshlrev_b32 v24, 16, v24              ; Lre
    v_lshlrev_b32 v25, 16, v25              ; Lim
    v_lshlrev_b32 v26, 16, v26              ; log_dt
    v_mul_f32 v26, {fbits(LOG2E)}, v26
    v_exp_f32 v26, v26
    s_nop 0
    v_cvt_pk_bf16_f32 v26, v26, v26
    v_lshlrev_b32 v26, 16, v26
    v_mul_f32 v27, v26, v24                 ; dt*re
    v_mul_f32 v28, v26, v25                 ; dt*im
    v_mul_f32 v27, {fbits(LOG2E)}, v27
    v_exp_f32 v27, v27                      ; |lam_bar|
    v_mul_f32 v28, {fbits(0.15915494309189535)}, v28
    v_fract_f32 v28, v28
    v_sin_f32 v29, v28
    v_cos_f32 v30, v28
    s_nop 0
    v_mul_f32 v{LR}, v27, v30
    v_mul_f32 v{LI}, v27, v29
    v_add_f32 v27, -1.0, v{LR}
    v_mul_f32 v28, v24, v24
    v_fmac_f32 v28, v25, v25
    v_rcp_f32 v28, v28
    v_mul_f32 v29, v27, v24
    v_fmac_f32 v29, v{LI}, v25
    v_mul_f32 v30, v{LI}, v24
    v_fma_f32 v30, -v27, v25, v30
    v_mul_f32 v{CR}, v29, v28
    v_mul_f32 v{CI}, v30, v28
    v_add_f32 v{CR}, v{CR}, v{CR}           ; 2*coef
    v_add_f32 v{CI}, v{CI}, v{CI}
    v_lshrrev_b32 v23, 5, v0
    s_lshl_b32 s10, s5, 1
    v_add_u32 v23, s10, v23                 ; chunk
    v_lshlrev_b32 v31, 15, v23
    v_lshl_add_u32 v31, v22, 2, v31
    s_mul_i32 s10, s{sBID}, {2048*128}
    s_add_u32 s10, s10, {Z_OFF}""")
    add64s(k, sZ, S_WS, 10)
    def scan_pass(out):
        k("v_mov_b32 v32, v31\ns_mov_b32 s30, 0")
        if out:
            k(f"""v_mul_u32_u24 v33, {256*2560//256}, v23
            v_lshlrev_b32 v33, 8, v33
            s_lshl_b32 s10, s{sBID}, 7
            v_lshl_add_u32 v33, v22, 2, v33
            v_add_u32 v33, s10, v33""")
        def loads(base):
            for j in range(16): k(f"global_load_dword v{base+j}, v32, s[{sZ}:{sZ+1}] offset:{128*j} sc1")
            k("v_add_u32 v32, 2048, v32")
        def process(base):
            for j in range(16):
                z = base + j
                k(f"""v_lshlrev_b32 v34, 16, v{z}
                v_and_b32 v35, 0xffff0000, v{z}
                v_fma_f32 v34, -v{LI}, v{HI}, v34
                v_fma_f32 v35, v{LI}, v{HR}, v35
                v_fma_f32 v{HI}, v{LR}, v{HI}, v35
                v_fma_f32 v{HR}, v{LR}, v{HR}, v34""")
                if out:
                    k(f"""v_mul_f32 v36, v{CR}, v{HR}
                    v_mul_f32 v37, v{CI}, v{HR}
                    v_fma_f32 v36, -v{CI}, v{HI}, v36
                    v_fma_f32 v37, v{CR}, v{HI}, v37
                    v_cvt_pk_bf16_f32 v{z}, v36, -v37""")
            if out:
                for j in range(0, 16, 2):
                    k(f"global_store_dword v33, v{base+j}, s[{sHB}:{sHB+1}]\nglobal_store_dword v33, v{base+j+1}, s[{sHB}:{sHB+1}] offset:2560\nv_add_u32 v33, 5120, v33")
        lbl = k.new('L_scan')
        loads(ZB)
        k(f"{lbl}:")
        loads(ZB+16)
        k("s_waitcnt vmcnt(16)")
        process(ZB)
        loads(ZB)
        k("s_waitcnt vmcnt(16)")
        process(ZB+16)
        k(f"s_add_u32 s30, s30, 1\ns_cmp_lt_u32 s30, 8\ns_cbranch_scc1 {lbl}\ns_waitcnt vmcnt(0)")
    add64(k, sHB, S_WS, HB_OFF)
    k(f"v_mov_b32 v{HR}, 0\nv_mov_b32 v{HI}, 0")
    scan_pass(False)
    k(f"""v_lshlrev_b32 v34, 5, v23
    v_add_u32 v34, v34, v22
    v_lshlrev_b32 v34, 3, v34
    ds_write_b64 v34, v[{HR}:{HI}]
    v_mov_b32 v36, v{LR}
    v_mov_b32 v37, v{LI}""")
    for _ in range(8):
        k("""v_mul_f32 v38, v36, v36
        v_fma_f32 v38, -v37, v37, v38
        v_mul_f32 v39, v36, v37
        v_add_f32 v37, v39, v39
        v_mov_b32 v36, v38""")
    k(f"""s_waitcnt lgkmcnt(0)
    s_barrier
    v_lshlrev_b32 v34, 3, v22""")
    for c in range(7): k(f"ds_read_b64 v[{40+2*c}:{41+2*c}], v34 offset:{c*256}")
    k(f"s_waitcnt lgkmcnt(0)\nv_mov_b32 v{HR}, 0\nv_mov_b32 v{HI}, 0")
    for c in range(7):
        k(f"""v_mul_f32 v38, v36, v{HR}
        v_fma_f32 v38, -v37, v{HI}, v38
        v_mul_f32 v39, v37, v{HR}
        v_fma_f32 v39, v36, v{HI}, v39
        v_add_f32 v38, v38, v{40+2*c}
        v_add_f32 v39, v39, v{41+2*c}
        v_cmp_lt_u32 vcc, {c}, v23
        v_cndmask_b32 v{HR}, v{HR}, v38, vcc
        v_cndmask_b32 v{HI}, v{HI}, v39, vcc""")
    scan_pass(True)
    lw = k.new('L_wb')
    k(f"s_waitcnt vmcnt(0)\ns_barrier\ns_cmp_eq_u32 s5, 0\ns_cbranch_scc0 {lw}\nbuffer_wbl2 sc1\ns_waitcnt vmcnt(0)\n{lw}:\ns_mov_b32 s30, 1")
    flag_store(k, sFB, 30)

def b2_role(k, cfg):
    k.label('L_b2')
    sCG, sRQ = 42, 43
    k(f"""s_mul_i32 s{sRQ}, s{sBID}, 52
    s_lshr_b32 s{sRQ}, s{sRQ}, 8
    s_mul_i32 s10, s{sRQ}, 5
    s_sub_u32 s{sCG}, s{sBID}, s10""")
    def wdst(kap, t):
        q = (kap*2+t)*4
        return ('a', q) if q < 256 else ('v', 192 + q - 256)
    def wreg(kap, t):
        kd, r = wdst(kap, t); return ar(r,4) if kd == 'a' else vr(r,4)
    VW = 16
    k(f"""s_load_dwordx2 s[44:45], s[0:1], {ARG['B_Cre']}
    s_load_dwordx2 s[46:47], s[0:1], {ARG['B_Cim']}
    s_load_dwordx2 s[48:49], s[0:1], {ARG['B_Dskip']}
    s_load_dwordx2 s[50:51], s[0:1], {ARG['B_x']}
    s_load_dwordx2 s[52:53], s[0:1], {ARG['out']}
    s_lshl_b32 s10, s{sCG}, 7
    s_lshl_b32 s11, s5, 5
    s_add_u32 s54, s10, s11
    v_and_b32 v17, 15, v0
    v_lshlrev_b32 v17, 1, v17
    v_add_u32 v17, s54, v17                  ; d = base + 2n
    v_mul_u32_u24 v{VW}, 1280, v17
    v_lshrrev_b32 v18, 4, v0
    v_lshl_add_u32 v{VW}, v18, 3, v{VW}      ; + 4g*2
    s_mov_b32 s{sPSELLO}, 0x05040100
    s_mov_b32 s{sPSELHI}, 0x07060302
    s_waitcnt lgkmcnt(0)""")
    LAND = (64, 96, 128)
    def issue(b):
        L = LAND[b % 3]
        for kk in range(4):
            kap = 4*b + kk
            for t in range(2):
                k(f"global_load_dwordx2 {vr(L+8*kk+4*t,2)}, v{VW}, s[44:45] offset:{kap*32 + t*1280}")
                k(f"global_load_dwordx2 {vr(L+8*kk+4*t+2,2)}, v{VW}, s[46:47] offset:{kap*32 + t*1280}")
    def consume(b):
        L = LAND[b % 3]
        for kk in range(4):
            for t in range(2):
                kd, r = wdst(4*b+kk, t)
                r0, i0 = L+8*kk+4*t, L+8*kk+4*t+2
                for d in range(4):
                    sel = sPSELLO if (d & 1) == 0 else sPSELHI
                    src_r, src_i = r0 + (d >> 1), i0 + (d >> 1)
                    if kd == 'v': k(f"v_perm_b32 v{r+d}, v{src_i}, v{src_r}, s{sel}")
                    else: k(f"v_perm_b32 v{20+(d&1)}, v{src_i}, v{src_r}, s{sel}\nv_accvgpr_write_b32 a{r+d}, v{20+(d&1)}")
    for b in range(3): issue(b)
    for b in range(10):
        k(f"s_waitcnt vmcnt({16*min(9-b, 2)})")
        consume(b)
        if b + 3 < 10: issue(b+3)
    DS = 24
    k(f"""v_lshrrev_b32 v18, 4, v0
    v_lshlrev_b32 v18, 3, v18
    v_add_u32 v18, s54, v18                  ; d0
    v_lshlrev_b32 v19, 1, v18
    global_load_dwordx4 v[20:23], v19, s[48:49]
    v_and_b32 v17, 15, v0
    s_lshl_b32 s10, s{sRQ}, 9
    v_add_u32 v17, s10, v17
    v_mul_u32_u24 v8, 1280, v17
    v_add_u32 v8, v8, v19                    ; x offset
    s_mov_b32 s10, 5120
    v_mul_lo_u32 v9, v17, s10
    v_lshl_add_u32 v9, v18, 2, v9
    v_add_u32 v9, 2560, v9
    s_waitcnt vmcnt(0)""")
    for j in range(4):
        k(f"v_lshlrev_b32 v{DS+2*j}, 16, v{20+j}\nv_and_b32 v{DS+2*j+1}, 0xffff0000, v{20+j}")
    k(f"""v_lshrrev_b32 v{pT0}, 3, v0
    v_and_b32 v{pT1}, 7, v0
    v_xor_b32 v{pT1}, v{pT1}, v{pT0}
    s_and_b32 s10, s5, 1
    s_lshl_b32 s10, s10, 3
    v_add_u32 v{pT0}, s10, v{pT0}            ; row = 8*(w&1) + (l>>3)
    v_mul_u32_u24 v{pX0}, 2560, v{pT0}
    v_lshl_add_u32 v{pX0}, v{pT1}, 4, v{pX0}
    s_lshr_b32 s10, s5, 1
    s_mul_i32 s10, s10, 1280
    v_add_u32 v{pX0}, s10, v{pX0}
    v_and_b32 v{pT0}, 7, v0
    v_bfe_u32 v{pT1}, v0, 3, 1
    v_mul_u32_u24 v{pRA}, 20480, v{pT1}
    v_lshl_add_u32 v{pRA}, v{pT0}, 7, v{pRA}
    v_lshrrev_b32 v{pT1}, 4, v0
    v_xor_b32 v{pRB}, v{pT1}, v{pT0}
    v_xor_b32 v{pT1}, 4, v{pRB}
    v_lshl_add_u32 v{pRB+1}, v{pT1}, 4, v{pRA}
    v_lshl_add_u32 v{pRB}, v{pRB}, 4, v{pRA}
    v_lshlrev_b32 v10, 7, v0
    v_add_u32 v10, {F_BPROG}, v10
    s_mov_b32 s30, 1""")
    poll_flags(k, 30, 0xfffff, 10, 'b2')
    k(f"s_mul_i32 s10, s{sRQ}, {512*2560}\ns_add_u32 s10, s10, {HB_OFF}")
    add64s(k, sPX, S_WS, 10)
    def dbase(buf_s):
        k(f"""s_and_b32 s13, s5, 1
        s_mul_i32 s13, s13, 20480
        s_lshr_b32 s12, s5, 1
        s_mul_i32 s12, s12, 10240
        s_add_u32 s13, s13, s12
        s_add_u32 s13, s13, s{buf_s}""")
    def dlist(): return [f"s_add_u32 m0, s13, {i*1024 - i*128}\ns_nop 0\nglobal_load_lds_dwordx4 v{pX0}, s[{sPX}:{sPX+1}] offset:{i*128} sc1" for i in range(10)]
    k(f"s_mov_b32 s31, {XBUF}"); dbase(31)
    for x in dlist(): k(x)
    k(f"s_mov_b32 s{sPS}, 0\ns_mov_b32 s{sPRD}, {XBUF}\nv_add_u32 v{pRE}, {XBUF}, v{pRB}\nv_add_u32 v{pRE+1}, {XBUF}, v{pRB+1}\ns_waitcnt vmcnt(0)")
    FR = 48; ACC2 = 32; XS = 40; OUT2 = 56
    def gemm(extra):
        def rd(kap):
            return [f"ds_read_b128 {vr(64 + 4*(kap % 4),4)}, v{pRE + (kap & 1)} offset:{(kap>>1)*1024}"]
        extra = list(extra)
        for x in rd(0) + rd(1) + rd(2): k(x)
        for kap in range(40):
            if kap + 3 < 40:
                for x in rd(kap+3): k(x)
            k(f"s_waitcnt lgkmcnt({min(3, 39-kap)})")
            for t in range(2):
                c = '0' if kap == 0 else vr(ACC2+4*t,4)
                k(f"v_mfma_f32_16x16x32_bf16 {vr(ACC2+4*t,4)}, {wreg(kap,t)}, {vr(64 + 4*(kap % 4),4)}, {c}")
            if (kap % 4) == 0 and extra: k(extra.pop(0))
        for x in extra: k(x)
    k.label('L_b2_loop')
    k("s_waitcnt vmcnt(2)\ns_barrier")
    k(f"global_load_dwordx4 {vr(XS,4)}, v8, s[50:51]")
    l1 = k.new('L_b2nd'); l2 = k.new('L_b2j')
    k(f"s_add_u32 s30, s{sPS}, 1\ns_cmp_ge_u32 s30, 32\ns_cbranch_scc1 {l1}")
    add64(k, sPX, sPX, 16*2560)
    k(f"s_xor_b32 s31, s{sPRD}, {XBSZ}"); dbase(31)
    gemm(dlist())
    k(f"s_waitcnt vmcnt(10)\ns_branch {l2}\n{l1}:")
    gemm([])
    k(f"s_waitcnt vmcnt(0)\n{l2}:")
    for j in range(4):
        k(f"""v_lshlrev_b32 v16, 16, v{XS+j}
        v_and_b32 v17, 0xffff0000, v{XS+j}
        v_mul_f32 v16, v16, v{DS+2*j}
        v_mul_f32 v17, v17, v{DS+2*j+1}
        v_cvt_pk_bf16_f32 v16, v16, v17
        v_and_b32 v17, 0xffff0000, v16
        v_lshlrev_b32 v16, 16, v16
        v_add_f32 v{OUT2+2*j}, v{ACC2+j}, v16
        v_add_f32 v{OUT2+2*j+1}, v{ACC2+4+j}, v17""")
    k(f"""global_store_dwordx4 v9, {vr(OUT2,4)}, s[52:53]
    global_store_dwordx4 v9, {vr(OUT2+4,4)}, s[52:53] offset:16
    v_add_u32 v8, {16*1280}, v8
    v_add_u32 v9, {16*5120}, v9
    s_xor_b32 s{sPRD}, s{sPRD}, {XBSZ}
    v_add_u32 v{pRE}, s{sPRD}, v{pRB}
    v_add_u32 v{pRE+1}, s{sPRD}, v{pRB+1}
    s_add_u32 s{sPS}, s{sPS}, 1
    s_cmp_lt_u32 s{sPS}, 32
    s_cbranch_scc1 L_b2_loop
    s_waitcnt vmcnt(0)
    s_endpgm""")
```

```python
from asmlib import *
from layout import *

S_KARG = 0
S_WG   = 2
S_XCC  = 3
S_H    = 4
S_W    = 5
S_DBG  = 6
S_WS   = 8
SPIN_LIMIT = 0x40000

KNAME = "concat_heads__memory_aug_recurrent_mem_tr__ssm_conv_s5__prompt_kernel"
ARG = dict(A_x=0, A_mem0=8, A_Wq=16, A_Wk=24, A_Wv=32, A_Wo=40, A_seg=48, B_x=56, B_Lre=64, B_Lim=72, B_Bre=80, B_Bim=88,
           B_Cre=96, B_Cim=104, B_ldt=112, B_Dskip=120, out=128, dbg=136, ws=144)

def prologue(k, nwg=256):
    k(f"""
    s_cmp_ge_u32 s2, {nwg}
    s_cbranch_scc1 L_end
    s_load_dwordx2 s[6:7], s[0:1], {ARG['dbg']}
    s_load_dwordx2 s[8:9], s[0:1], {ARG['ws']}
    s_getreg_b32 s3, hwreg(HW_REG_XCC_ID)
    s_and_b32 s3, s3, 7
    v_lshrrev_b32 v1, 6, v0
    v_and_b32 v0, 63, v0
    v_readfirstlane_b32 s5, v1
    s_waitcnt lgkmcnt(0)
    s_add_u32 s8, s8, 0x3fffff
    s_addc_u32 s9, s9, 0
    s_and_b32 s8, s8, 0xffc00000
    s_cmp_eq_u32 s5, 0
    s_cbranch_scc0 L_noticket
    s_lshl_b32 s10, s3, 5
    v_mov_b32 v2, s10
    v_mov_b32 v3, 1
    v_mov_b32 v5, 0
    s_mov_b64 exec, 1
    global_atomic_add v4, v2, v3, s[6:7] sc0
    s_waitcnt vmcnt(0)
    ds_write_b32 v5, v4
    s_mov_b64 exec, -1
    L_noticket:
    v_mov_b32 v5, 0
    s_waitcnt lgkmcnt(0)
    s_barrier
    ds_read_b32 v4, v5
    s_waitcnt lgkmcnt(0)
    v_readfirstlane_b32 s4, v4
    s_barrier
    """)

def srd(k, s, ptr, size):
    k(f"""s_mov_b32 s{s}, s{ptr}
    s_and_b32 s{s+1}, s{ptr+1}, 0xffff
    s_mov_b32 s{s+2}, {size}
    s_mov_b32 s{s+3}, 0x20000""")

def add64(k, d, a, imm, tmp=None):
    k(f"s_add_u32 s{d}, s{a}, {imm}\ns_addc_u32 s{d+1}, s{a+1}, 0")
def add64s(k, d, a, s):
    k(f"s_add_u32 s{d}, s{a}, s{s}\ns_addc_u32 s{d+1}, s{a+1}, 0")

def signal_init(k, tmp_v, tmp_v2):
    lbl = k.new('L_si')
    k(f"""s_waitcnt vmcnt(0)
    s_barrier
    s_cmp_eq_u32 s5, 0
    s_cbranch_scc0 {lbl}
    s_lshl_b32 s10, s3, 5
    s_add_u32 s10, s10, 4
    v_mov_b32 v{tmp_v}, s10
    v_mov_b32 v{tmp_v2}, 1
    s_mov_b64 exec, 1
    global_atomic_add v{tmp_v}, v{tmp_v2}, s[6:7]
    s_mov_b64 exec, -1
    {lbl}:""")

def wait_init(k, total, va, vd, sc):
    l = k.new('L_wi'); ok = k.new('L_wiok')
    k(f"""v_lshlrev_b32 v{va}, 5, v0
    v_add_u32 v{va}, 4, v{va}
    s_mov_b32 s{sc}, 0
    {l}:
    s_mov_b64 exec, 0xff
    global_load_dword v{vd}, v{va}, s[6:7] sc1
    s_waitcnt vmcnt(0)
    s_mov_b64 exec, -1
    v_readlane_b32 s10, v{vd}, 0
    v_readlane_b32 s11, v{vd}, 1
    s_add_u32 s10, s10, s11
    v_readlane_b32 s11, v{vd}, 2
    s_add_u32 s10, s10, s11
    v_readlane_b32 s11, v{vd}, 3
    s_add_u32 s10, s10, s11
    v_readlane_b32 s11, v{vd}, 4
    s_add_u32 s10, s10, s11
    v_readlane_b32 s11, v{vd}, 5
    s_add_u32 s10, s10, s11
    v_readlane_b32 s11, v{vd}, 6
    s_add_u32 s10, s10, s11
    v_readlane_b32 s11, v{vd}, 7
    s_add_u32 s10, s10, s11
    s_cmp_ge_u32 s10, {total}
    s_cbranch_scc1 {ok}
    s_sleep 4
    s_add_u32 s{sc}, s{sc}, 1
    s_cmp_lt_u32 s{sc}, {SPIN_LIMIT}
    s_cbranch_scc1 {l}
    s_branch L_timeout
    {ok}:""")

def epilogue(k):
    k(f"""
    L_timeout:
    v_mov_b32 v1, {DBG_ERR}
    v_mov_b32 v2, 0xdead
    s_mov_b64 exec, 1
    global_store_dword v1, v2, s[6:7]
    s_waitcnt vmcnt(0)
    L_end:
    s_endpgm""")

def wrap(body, launch, lds, kname=KNAME, header=""):
    return f"""{header}; @launch grid=({launch},1,1) block=(256,1,1) lds={lds}
.amdgcn_target "amdgcn-amd-amdhsa--gfx950"
.text
.globl {kname}
.p2align 8
.type {kname},@function
{kname}:
{body}
.section .rodata,"a"
.p2align 6
.amdhsa_kernel {kname}
  .amdhsa_next_free_vgpr 512
  .amdhsa_next_free_sgpr 102
  .amdhsa_accum_offset 256
  .amdhsa_group_segment_fixed_size 0
  .amdhsa_kernarg_size 152
  .amdhsa_user_sgpr_count 2
  .amdhsa_user_sgpr_kernarg_segment_ptr 1
  .amdhsa_system_sgpr_workgroup_id_x 1
.end_amdhsa_kernel
"""
```

```python
MB = 1<<20
X_OFF    = 0
XV_SLOT  = 512*1024
XAG_OFF  = 1024*1024
RS_OFF   = 4*MB
RS_STRIDE= 512*1024
AG_OFF   = 5*MB
AG_SLOT  = 8192
AG_JSTR  = 32768
FLAG_OFF = 5*MB + 512*1024
F_KPROG = 0
F_VPROG = 4096
F_KMF = 8192
F_OPROG = 16384
F_BPROG = 20480
F_QPROG = 28672
F_SIZE = 32768
KM_OFF   = 8*MB
KV_OFF   = 16*MB
O_OFF    = 48*MB
Z_OFF    = 64*MB
HB_OFF   = 72*MB
Q_OFF    = 88*MB
STAMP_OFF= 80*MB
DBG_ERR = 8
```

```python
from common import *
import math, struct
def fbits(x): return struct.unpack('<I', struct.pack('<f', x))[0]
CSCALE = (128 ** -0.5) * math.log2(math.e)

pL16, pX0, pRA, pST, pT0, pT1 = 1, 2, 3, 4, 5, 6
pRB = 14
pRE = 12
pFR = 16
pACC = 40
pPK = 56
XBUF = 0
XBSZ = 40960
sPX = 16
sPS = 18
sPM0 = 19
sPO = 20
sPFL = 22
sPSELLO = 24; sPSELHI = 25; sPRD = 26
sPSPIN = 27
sPTMP = 28

def load_w_nmajor(k, arg, nk, row_bytes, lane_col_bytes_sgpr, dst, srd_s=76, land=(64, 96, 128), size=640*4096*2, voff=8):
    k(f"""s_load_dwordx2 s[10:11], s[0:1], {ARG[arg]}
    v_and_b32 v{voff+1}, 15, v0
    v_lshrrev_b32 v{voff+2}, 4, v0
    v_lshlrev_b32 v{voff+2}, 3, v{voff+2}          ; 8g
    s_mov_b32 s12, {row_bytes}
    v_mul_lo_u32 v{voff}, v{voff+2}, s12
    v_lshl_add_u32 v{voff}, v{voff+1}, 2, v{voff}
    v_add_u32 v{voff}, s{lane_col_bytes_sgpr}, v{voff}
    s_mov_b32 s{sPSELLO}, 0x05040100
    s_mov_b32 s{sPSELHI}, 0x07060302
    s_waitcnt lgkmcnt(0)""")
    srd(k, srd_s, 10, size)
    nb = nk // 2
    def issue(b):
        L = land[b % 3]
        for kk in range(2):
            for i in range(8):
                off = (32*(2*b+kk) + i)*row_bytes
                k(f"s_mov_b32 s{10+(i&1)}, {off}\nbuffer_load_dword v{L+8*kk+i}, v{voff}, s[{srd_s}:{srd_s+3}], s{10+(i&1)} offen")
    def consume(b):
        L = land[b % 3]
        for kk in range(2):
            for t in range(2):
                kd, r = dst(2*b+kk, t)
                sel = sPSELLO if t == 0 else sPSELHI
                for d in range(4):
                    lo, hi = L+8*kk+2*d, L+8*kk+2*d+1
                    if kd == 'v': k(f"v_perm_b32 v{r+d}, v{hi}, v{lo}, s{sel}")
                    else: k(f"v_perm_b32 v{voff+3+(d&1)}, v{hi}, v{lo}, s{sel}\nv_accvgpr_write_b32 a{r+d}, v{voff+3+(d&1)}")
    for b in range(min(3, nb)): issue(b)
    for b in range(nb):
        rem = min(nb-1-b, 2)
        k(f"s_waitcnt vmcnt({16*rem})")
        consume(b)
        if b + 3 < nb: issue(b+3)

def x_setup(k, arg):
    k(f"""s_load_dwordx2 s[{sPX}:{sPX+1}], s[0:1], {ARG[arg]}
    v_lshlrev_b32 v{pL16}, 4, v0
    v_lshrrev_b32 v{pT0}, 3, v0                  ; l>>3
    v_and_b32 v{pT1}, 7, v0
    v_xor_b32 v{pT1}, v{pT1}, v{pT0}             ; chunk
    s_lshl_b32 s10, s5, 3
    v_add_u32 v{pT0}, s10, v{pT0}                ; row = 8w + (l>>3)
    v_mul_u32_u24 v{pX0}, 1280, v{pT0}
    v_lshl_add_u32 v{pX0}, v{pT1}, 4, v{pX0}
    v_and_b32 v{pT0}, 7, v0                      ; r7
    v_bfe_u32 v{pT1}, v0, 3, 1                   ; n>>3
    v_mul_u32_u24 v{pRA}, 10240, v{pT1}
    v_lshl_add_u32 v{pRA}, v{pT0}, 7, v{pRA}
    v_lshrrev_b32 v{pT1}, 4, v0                  ; g
    v_xor_b32 v{pRB}, v{pT1}, v{pT0}
    v_xor_b32 v{pT1}, 4, v{pRB}                  ; (4+g)^r7 == (g^r7)^4
    v_lshl_add_u32 v{pRB+1}, v{pT1}, 4, v{pRA}   ; odd
    v_lshl_add_u32 v{pRB}, v{pRB}, 4, v{pRA}     ; even
    s_waitcnt lgkmcnt(0)""")

def x_dma_list(bufsel_sgpr):
    return [f"s_add_u32 m0, s13, {i*1024 - i*128}\ns_nop 0\nglobal_load_lds_dwordx4 v{pX0}, s[{sPX}:{sPX+1}] offset:{i*128}" for i in range(10)]
def x_dma_base(k, bufsel_sgpr):
    k(f"s_mul_i32 s13, s5, 10240\ns_add_u32 s13, s13, s{bufsel_sgpr}")
def x_dma(k, bufsel_sgpr):
    x_dma_base(k, bufsel_sgpr)
    for x in x_dma_list(bufsel_sgpr): k(x)

def gemm_seg(k, wreg, order_wx, extra=()):
    def rd(kap):
        st = pFR + 8*(kap % 3)
        a = pRE + (kap & 1)
        return [f"ds_read_b128 {vr(st,4)}, v{a} offset:{(kap>>1)*1024}", f"ds_read_b128 {vr(st+4,4)}, v{a} offset:{20480 + (kap>>1)*1024}"]
    extra = list(extra)
    for x in rd(0) + rd(1): k(x)
    for kap in range(20):
        if kap + 2 < 20:
            for x in rd(kap+2): k(x)
        out = min(2, 19 - kap)
        k(f"s_waitcnt lgkmcnt({2*out})")
        st = pFR + 8*(kap % 3)
        for rho in range(2):
            for t in range(2):
                acc = pACC + 4*(2*rho+t)
                c = '0' if kap == 0 else vr(acc,4)
                w = wreg(kap, t); x = vr(st+4*rho, 4)
                a, b = (w, x) if order_wx else (x, w)
                k(f"v_mfma_f32_16x16x32_bf16 {vr(acc,4)}, {a}, {b}, {c}")
            if rho == 0 and (kap & 1) == 0 and extra: k(extra.pop(0))
    for x in extra: k(x)

def flag_store(k, sflag_off, val_sgpr, tmpv=pT0):
    l = k.new('L_fl')
    k(f"""s_cmp_eq_u32 s5, 0
    s_cbranch_scc0 {l}
    v_mov_b32 v{tmpv}, s{sflag_off}
    v_mov_b32 v{tmpv+1}, s{val_sgpr}
    s_mov_b64 exec, 1
    global_store_dword v{tmpv}, v{tmpv+1}, s[{sPFL}:{sPFL+1}] sc1
    s_mov_b64 exec, -1
    {l}:""")

def proj_role(k, kind, cfg):
    isK = kind != 'V'
    nm = {'K': 'kp', 'V': 'vp', 'Q': 'qp'}[kind]
    NSEG = cfg.get('nseg', 64)
    k.label(f'L_{nm}')
    add64(k, sPFL, S_WS, FLAG_OFF)
    sFO = 29
    k(f"s_lshl_b32 s{sFO}, s4, 7\ns_add_u32 s{sFO}, s{sFO}, {dict(K=F_KPROG, V=F_VPROG, Q=F_QPROG)[kind]}")
    k(f"s_mov_b32 s30, 0"); flag_store(k, sFO, 30)
    signal_init(k, pT0, pT1)
    x_setup(k, 'A_x')
    k(f"s_mov_b32 s31, {XBUF}")
    x_dma(k, 31)
    k("s_lshl_b32 s30, s4, 8\ns_lshl_b32 s31, s5, 6\ns_add_u32 s30, s30, s31")
    load_w_nmajor(k, dict(K='A_Wk', V='A_Wv', Q='A_Wq')[kind], 20, 8192, 30, lambda kap, t: ('a', (kap*2+t)*4))
    wreg = lambda kap, t: ar((kap*2+t)*4, 4)
    if kind == 'Q':
        k(f"s_lshl_b32 s10, s4, 13\ns_lshl_b32 s11, s5, 10\ns_add_u32 s10, s10, s11\ns_add_u32 s10, s10, {Q_OFF}")
        k(f"s_mov_b32 s34, {fbits(CSCALE)}\ns_mov_b32 s35, {fbits(CSCALE)}")
    else:
        k(f"s_lshl_b32 s10, s4, 14\ns_lshl_b32 s11, s5, {10 if isK else 11}\ns_add_u32 s10, s10, s11\ns_add_u32 s10, s10, {KV_OFF + (0 if isK else 8192)}")
    add64s(k, sPO, S_WS, 10)
    wait_init(k, cfg.get('total_init', 256), pT0, pT1, sPSPIN)
    k(f"s_mov_b32 s{sPS}, 0\ns_mov_b32 s{sPRD}, {XBUF}\nv_add_u32 v{pRE}, {XBUF}, v{pRB}\nv_add_u32 v{pRE+1}, {XBUF}, v{pRB+1}")
    k("s_waitcnt vmcnt(0)")
    if cfg.get('pstamps'): k("s_memrealtime s[40:41]\ns_memtime s[42:43]\ns_mov_b32 s48, 0\ns_mov_b32 s49, 0\ns_waitcnt lgkmcnt(0)")
    k.label(f'L_{nm}_loop')
    if cfg.get('pstamps'): k("s_memtime s[50:51]")
    k("s_waitcnt vmcnt(2)\ns_barrier")
    l0 = k.new('L_nf')
    k(f"s_cmp_lt_u32 s{sPS}, 2\ns_cbranch_scc1 {l0}\ns_sub_u32 s30, s{sPS}, 1")
    flag_store(k, sFO, 30)
    k(f"{l0}:")
    l1 = k.new('L_nd'); l2 = k.new('L_nd2')
    k(f"s_add_u32 s30, s{sPS}, 1\ns_cmp_ge_u32 s30, {NSEG}\ns_cbranch_scc1 {l1}")
    add64(k, sPX, sPX, 32*1280)
    k(f"s_xor_b32 s31, s{sPRD}, {XBSZ}")
    x_dma_base(k, 31)
    if cfg.get('pstamps'): k("s_memtime s[52:53]")
    gemm_seg(k, wreg, isK, x_dma_list(31))
    k(f"s_branch {l2}\n{l1}:")
    if cfg.get('pstamps'): k("s_memtime s[52:53]")
    gemm_seg(k, wreg, isK)
    k(f"{l2}:")
    if cfg.get('pstamps'): k("s_memtime s[54:55]\ns_waitcnt lgkmcnt(0)\ns_sub_u32 s56, s52, s50\ns_add_u32 s48, s48, s56\ns_sub_u32 s56, s54, s52\ns_add_u32 s49, s49, s56")
    if isK:
        if kind == 'Q':
            for r in range(pACC, pACC+16, 2): k(f"v_pk_mul_f32 {vr(r,2)}, {vr(r,2)}, s[34:35]")
        for rho in range(2):
            for i in range(4):
                k(f"v_cvt_pk_bf16_f32 v{pPK+4*rho+i}, v{pACC+8*rho+i}, v{pACC+8*rho+4+i}")
            k(f"global_store_dwordx4 v{pL16}, {vr(pPK+4*rho,4)}, s[{sPO}:{sPO+1}] offset:{0 if rho == 0 else 0} sc1" if rho == 0 else "")
        add64(k, 14, sPO, 4096)
        k(f"global_store_dwordx4 v{pL16}, {vr(pPK+4,4)}, s[14:15] sc1")
    else:
        for t in range(2):
            for rho in range(2):
                a = pACC + 4*(2*rho+t)
                k(f"v_cvt_pk_bf16_f32 v{pPK+4*t+2*rho}, v{a}, v{a+1}\nv_cvt_pk_bf16_f32 v{pPK+4*t+2*rho+1}, v{a+2}, v{a+3}")
            k(f"global_store_dwordx4 v{pL16}, {vr(pPK+4*t,4)}, s[{sPO}:{sPO+1}] offset:{1024*t} sc1")
    add64(k, sPO, sPO, 32*(8192 if kind == 'Q' else 16384))
    k(f"""s_xor_b32 s{sPRD}, s{sPRD}, {XBSZ}
    v_add_u32 v{pRE}, s{sPRD}, v{pRB}
    v_add_u32 v{pRE+1}, s{sPRD}, v{pRB+1}
    s_add_u32 s{sPS}, s{sPS}, 1
    s_cmp_lt_u32 s{sPS}, {NSEG}
    s_cbranch_scc1 L_{nm}_loop
    s_waitcnt vmcnt(0)
    s_barrier
    s_mov_b32 s30, {NSEG}""")
    flag_store(k, sFO, 30)
    if cfg.get('pstamps'):
        k(f"""s_memrealtime s[44:45]
        s_memtime s[46:47]
        s_waitcnt lgkmcnt(0)
        s_sub_u32 s44, s44, s40
        s_sub_u32 s46, s46, s42
        s_lshl_b32 s10, s3, 5
        s_add_u32 s10, s10, s4
        s_lshl_b32 s10, s10, 4
        s_add_u32 s10, s10, {STAMP_OFF}
        v_mov_b32 v1, s10
        v_mov_b32 v4, s44
        v_mov_b32 v5, s46
        v_mov_b32 v6, s48
        v_mov_b32 v7, s49
        global_store_dwordx4 v1, v[4:7], s[8:9]""")
    k("s_waitcnt vmcnt(0)\ns_endpgm")
PROJ_LDS = 2*XBSZ
```

```python
from common import *
import math, struct
def fbits(x): return struct.unpack('<I', struct.pack('<f', x))[0]
CSCALE = (128 ** -0.5) * math.log2(math.e)

vL16, vXL, vRS01, vRS4, vRSIN, vAGO, vTR, vTW, vOW, vKM, vIDX, vVXA, vKXA, vT0, vT1, vDMA, vFL, vWV, vBP = range(1, 20)
mA = 20; mB = 40
aQ0, aQ1, aK0, aK1, aV0, aV1 = 60, 64, 68, 72, 76, 80
WVl = 84
XRv = 100
XO = 20
KX1 = [84, 88, 92, 96]
KX2 = [36, 80, 104, 108]
T0, T1, T2 = 40, 44, 48
E1, E2, E0 = 52, 56, 60
PKQ = 64; PKK = 72
P12 = 64; P0 = 72
VM1 = 68; VM0 = 70
VX = 20
OT0, OT1 = 28, 32
OP = 96
WoA = 84
RL = 92
aW = 36; ZQ = 56
RSR = 20
PUB = 102
def wq(own, t, b): return ar((0 if own else 80) + (b*2 + t)*8, 8)
def wk_base(own, t, b):
    if own: return ('a', 160 + (b*2 + t)*8)
    i = b*2 + t
    return ('a', 240 + i*8) if i < 2 else ('v', 112 + (i-2)*8)
def R8(kd_r): return ar(kd_r[1], 8) if kd_r[0] == 'a' else vr(kd_r[1], 8)
def wk(own, t, b): return R8(wk_base(own, t, b))
def wo_base(tile, b): return ('v', 176 + (b*5 + tile)*8)
def wo(tile, b): return R8(wo_base(tile, b))

KVS = 0
IMG = 32768; IMG_U = 1152
OIMG = IMG + 4608; ODUM = OIMG + 2048
WVS = 40960
REC_LDS = WVS + 81920

sS = 16; sXO = 18; sXI = 20; sRS = 22; sRS2 = 24; sAG = 26; sAGX = 28; sAGR = 30; sKV = 32; sKM = 34; sFL = 36
sTX = 38; sTR = 39; sSLOT = 40; sSPIN = 41; sMG = 42; sMV = 44; sM4 = 46; sRED = 48; sJ = 49; sPAR = 50; sC = 52
sTR2 = 51; sKF = 17
sAGI = 54
sTMP = 56
sM0 = 64; sSLOWF = 65; sXB = 66; sAGB = 68; sSELLO = 70; sSELHI = 71; sSEL4 = 72; sMLO = 74
sXAO = 92; sXAI = 94

def load_weights(k):
    batches = []
    def qkv_rows(b):
        rows = []
        for hb in range(2):
            for rho in range(4):
                k0 = 64*b + 32*hb + 8*(rho & 1) + 2*(rho >> 1)
                rows.append((k0*8192, (k0+1)*8192))
        return rows
    for own in (True, False):
        for b in range(5):
            base = (0 if own else 80)
            dst = [(('a', base + (b*2+0)*8 + i), ('a', base + (b*2+1)*8 + i)) for i in range(8)]
            batches.append(dict(T='q', voff=64 if own else 67, rows=qkv_rows(b), dst=dst, sel=None))
    for own in (True, False):
        for b in range(5):
            k0d, r0 = wk_base(own, 0, b); k1d, r1 = wk_base(own, 1, b)
            dst = [((k0d, r0+i), (k1d, r1+i)) for i in range(8)]
            batches.append(dict(T='k', voff=64 if own else 67, rows=qkv_rows(b), dst=dst, sel=None))
    for b in range(5):
        batches.append(dict(T='v', voff=64, rows=qkv_rows(b), dst=None, sel=None, lds=b))
    for b in range(2):
        for grp in range(3):
            rows = []
            for hb in range(2):
                for rho in range(4):
                    e0 = 64*b + 32*(rho & 1) + 16*hb + 2*(rho >> 1)
                    extra = 64 if grp == 1 else 0
                    rows.append((e0*1280 + extra, (e0+1)*1280 + extra))
            if grp < 2:
                k0d, r0 = wo_base(2*grp, b); k1d, r1 = wo_base(2*grp+1, b)
                dst = [((k0d, r0+i), (k1d, r1+i)) for i in range(8)]
                batches.append(dict(T='o', voff=65, rows=rows, dst=dst, sel=None))
            else:
                k0d, r0 = wo_base(4, b)
                dst = [((k0d, r0+i), None) for i in range(8)]
                batches.append(dict(T='o', voff=66, rows=rows, dst=dst, sel=sSEL4))
    k(f"""
    v_and_b32 v68, 15, v0
    v_lshrrev_b32 v69, 4, v0            ; gb
    v_lshrrev_b32 v70, 1, v69           ; gb>>1
    v_and_b32 v71, 1, v69               ; gb&1
    v_lshlrev_b32 v72, 4, v70
    v_lshl_add_u32 v72, v71, 2, v72     ; 16*(gb>>1)+4*(gb&1)
    v_lshlrev_b32 v64, 13, v72          ; *8192
    v_lshl_add_u32 v64, v68, 2, v64     ; + 2n*2
    s_lshl_b32 s10, s4, 8               ; h*256
    s_lshl_b32 s11, s5, 6               ; 32w*2
    s_add_u32 s10, s10, s11
    v_add_u32 v64, s10, v64
    s_xor_b32 s11, s{sJ}, 1
    s_mul_i32 s11, s11, {320*8192}
    v_add_u32 v67, s11, v64
    s_mul_i32 s11, s{sJ}, {320*8192}
    v_add_u32 v64, s11, v64
    v_lshlrev_b32 v72, 3, v70
    v_lshl_add_u32 v72, v71, 2, v72     ; 8*(gb>>1)+4*(gb&1)
    v_mul_u32_u24 v65, 1280, v72
    v_lshl_add_u32 v65, v68, 2, v65     ; + 2n*2
    s_mul_i32 s10, s4, {128*1280}
    s_mul_i32 s11, s{sJ}, 640
    s_add_u32 s10, s10, s11
    v_add_u32 v65, s10, v65
    s_lshr_b32 s11, s5, 1
    s_lshl_b32 s11, s11, 6
    s_add_u32 s11, s11, 512
    v_add_u32 v66, s11, v65             ; group 8+(w>>1)
    s_lshl_b32 s11, s5, 7
    v_add_u32 v65, s11, v65             ; group 2w
    s_mov_b32 s{sSELLO}, 0x05040100
    s_mov_b32 s{sSELHI}, 0x07060302
    s_and_b32 s10, s5, 1
    s_cmp_eq_u32 s10, 0
    s_cselect_b32 s{sSEL4}, s{sSELLO}, s{sSELHI}
    """)
    SR = {'q': 76, 'k': 80, 'v': 84, 'o': 88}
    for T, arg in (('q', 'A_Wq'), ('k', 'A_Wk'), ('v', 'A_Wv'), ('o', 'A_Wo')):
        k(f"s_load_dwordx2 s[10:11], s[0:1], {ARG[arg]}\ns_waitcnt lgkmcnt(0)")
        srd(k, SR[T], 10, 640*4096*2)
    LAND = [20, 36, 84]
    def issue(i):
        B = batches[i]; s = SR[B['T']]
        land = LAND[i % 3]
        for p, (r0, r1) in enumerate(B['rows']):
            k(f"s_mov_b32 s10, {r0}\nbuffer_load_dword v{land+2*p}, v{B['voff']}, s[{s}:{s+3}], s10 offen")
            k(f"s_mov_b32 s11, {r1}\nbuffer_load_dword v{land+2*p+1}, v{B['voff']}, s[{s}:{s+3}], s11 offen")
    def consume(i):
        B = batches[i]; land = LAND[i % 3]
        if B['dst'] is None:
            for p in range(8):
                lo, hi = land+2*p, land+2*p+1
                k(f"v_perm_b32 v{68+p}, v{hi}, v{lo}, s{sSELLO}\nv_perm_b32 v{76+p}, v{hi}, v{lo}, s{sSELHI}")
            b = B['lds']
            for t in range(2):
                for hf in range(2):
                    k(f"ds_write_b128 v{vWV}, {vr(68+8*t+4*hf,4)} offset:{((b*2+t)*2+hf)*1024}")
            return
        for p in range(8):
            d0, d1 = B['dst'][p]
            lo, hi = land+2*p, land+2*p+1
            outs = [(d0, B['sel'])] if B['sel'] is not None else [(d0, sSELLO), (d1, sSELHI)]
            for n, (d, sel) in enumerate(outs):
                if d[0] == 'v':
                    k(f"v_perm_b32 v{d[1]}, v{hi}, v{lo}, s{sel}")
                else:
                    t = 52 + ((2*p + n) % 8)
                    k(f"v_perm_b32 v{t}, v{hi}, v{lo}, s{sel}\nv_accvgpr_write_b32 a{d[1]}, v{t}")
    n = len(batches)
    for i in range(3): issue(i)
    for i in range(n):
        rem = min(n - 1 - i, 2)
        k(f"s_waitcnt vmcnt({16*rem})")
        consume(i)
        if i + 3 < n: issue(i+3)

def addr_setup(k):
    k(f"""
    v_lshlrev_b32 v{vL16}, 4, v0
    s_lshl_b32 s10, s5, 10
    v_add_u32 v{vXL}, s10, v{vL16}            ; w*1024 + lane*16
    s_lshl_b32 s10, s5, 12
    v_add_u32 v{vDMA}, s10, v{vL16}           ; w*4096 + lane*16
    s_mul_i32 s10, s5, 20480
    s_add_u32 s10, s10, {WVS}
    v_add_u32 v{vWV}, s10, v{vL16}
    v_and_b32 v20, 15, v0                     ; n
    v_bfe_u32 v21, v0, 4, 1                   ; rh
    v_lshrrev_b32 v22, 5, v0                  ; t
    v_lshrrev_b32 v23, 2, v20                 ; n>>2
    v_and_b32 v24, 3, v20                     ; n&3
    v_lshlrev_b32 v{vBP}, 4, v21
    s_lshl_b32 s10, s5, 3
    v_add_u32 v25, s10, v23
    v_lshl_add_u32 v25, v25, 1, v21
    v_lshlrev_b32 v25, 12, v25
    v_lshl_add_u32 v26, v22, 2, v24
    v_lshl_add_u32 v25, v26, 4, v25
    s_lshl_b32 s11, s4, 7
    v_add_u32 v{vRS01}, s11, v25
    s_lshr_b32 s10, s5, 1
    s_add_u32 s10, s10, 8
    s_lshl_b32 s10, s10, 2
    v_add_u32 v25, s10, v23
    v_lshl_add_u32 v25, v25, 1, v21
    v_lshlrev_b32 v25, 12, v25
    s_and_b32 s10, s5, 1
    s_lshl_b32 s10, s10, 2
    v_add_u32 v26, s10, v24
    v_lshl_add_u32 v25, v26, 4, v25
    v_add_u32 v{vRS4}, s11, v25
    s_lshl_b32 s10, s4, 1
    s_add_u32 s10, s10, s5
    s_add_u32 s11, s4, 64
    s_cmp_lt_u32 s5, 2
    s_cselect_b32 s10, s10, s11               ; unit
    s_cselect_b32 s{sRED}, 1, 0
    s_cmp_eq_u32 s5, 2
    s_cselect_b32 s11, 1, 0
    s_cmp_lt_u32 s4, 16
    s_cselect_b32 s11, s11, 0
    s_or_b32 s{sRED}, s{sRED}, s11
    s_cmp_eq_u32 s{sRED}, 0
    s_cselect_b32 s10, 0, s10
    s_lshl_b32 s11, s10, 12
    v_add_u32 v{vRSIN}, s11, v{vL16}
    s_lshr_b32 s11, s10, 1                    ; o
    s_and_b32 s10, s10, 1                     ; rh_u
    s_lshr_b32 s56, s11, 3
    s_lshl_b32 s56, s56, 10
    s_lshr_b32 s57, s11, 1
    s_and_b32 s57, s57, 3
    s_lshl_b32 s57, s57, 8
    s_add_u32 s56, s56, s57
    s_and_b32 s57, s11, 1
    s_lshl_b32 s57, s57, 7
    s_add_u32 s56, s56, s57
    s_lshl_b32 s57, s10, 6
    s_add_u32 s56, s56, s57
    v_lshrrev_b32 v25, 4, v0
    v_and_b32 v26, 1, v25
    v_lshrrev_b32 v27, 1, v25
    v_lshl_add_u32 v26, v26, 1, v27
    v_lshlrev_b32 v26, 4, v26
    v_and_b32 v27, 3, v0
    v_lshl_add_u32 v26, v27, 2, v26
    v_add_u32 v{vAGO}, s56, v26
    v_lshrrev_b32 v25, 4, v0
    v_lshlrev_b32 v25, 2, v25
    v_bfe_u32 v26, v0, 3, 1
    v_add_u32 v25, v25, v26
    v_bfe_u32 v26, v0, 2, 1
    v_mul_u32_u24 v26, 34, v26
    v_add_u32 v25, v25, v26
    v_and_b32 v26, 1, v0
    v_lshl_add_u32 v25, v26, 4, v25
    v_bfe_u32 v26, v0, 1, 1
    v_mul_u32_u24 v26, 72, v26
    v_add_u32 v25, v25, v26
    v_lshlrev_b32 v25, 3, v25
    v_add_u32 v{vTR}, {IMG}, v25
    v_lshl_add_u32 v25, v21, 4, v20
    v_mul_u32_u24 v26, 34, v22
    v_add_u32 v25, v25, v26
    v_lshlrev_b32 v25, 3, v25
    s_mul_i32 s10, s5, {IMG_U}
    s_add_u32 s10, s10, {IMG}
    v_add_u32 v{vTW}, s10, v25
    s_lshr_b32 s10, s5, 1
    s_lshl_b32 s10, s10, 10
    s_and_b32 s11, s5, 1
    s_lshl_b32 s11, s11, 7
    s_add_u32 s10, s10, s11
    s_add_u32 s10, s10, {OIMG}
    v_add_u32 v25, s10, v{vL16}
    v_add_u32 v26, {ODUM}, v{vL16}
    v_cmp_gt_u32 vcc, 8, v20
    v_cndmask_b32 v{vOW}, v26, v25, vcc
    s_lshl_b32 s10, s{sJ}, 11
    s_lshl_b32 s11, s5, 9
    s_add_u32 s10, s10, s11
    v_lshlrev_b32 v25, 3, v0
    v_add_u32 v{vKM}, s10, v25
    v_mov_b32 v25, 0x44444444
    v_mov_b32 v26, 0xeeeeeeee
    v_cndmask_b32 v{vIDX}, v26, v25, vcc
    v_add_u32 v{vKXA}, {KVS}, v{vL16}
    s_lshl_b32 s10, s5, 11
    s_add_u32 s10, s10, {KVS + 8192}
    v_add_u32 v{vVXA}, s10, v{vL16}
    v_and_b32 v25, 1, v0
    v_lshlrev_b32 v25, 12, v25
    s_lshl_b32 s10, s4, 7
    v_add_u32 v{vFL}, s10, v25
    s_mov_b32 s{sMG}, 0
    s_mov_b32 s{sMG+1}, -1
    s_mov_b32 s{sMV}, 0x00ff00ff
    s_mov_b32 s{sMV+1}, 0x00ff00ff
    s_mov_b32 s{sM4}, 0x000f000f
    s_mov_b32 s{sM4+1}, 0x000f000f
    s_mov_b32 s{sMLO}, -1
    s_mov_b32 s{sMLO+1}, 0
    s_mov_b32 s{sC}, {fbits(CSCALE)}
    s_mov_b32 s{sC+1}, {fbits(CSCALE)}
    """)
    k(f"s_mul_i32 s10, s{sJ}, {RS_STRIDE}\ns_add_u32 s10, s10, {RS_OFF}")
    add64s(k, sRS, S_WS, 10); add64(k, sRS2, sRS, 32768)
    k(f"s_mul_i32 s10, s{sJ}, {AG_JSTR}\ns_add_u32 s10, s10, {AG_OFF}"); add64s(k, sAGB, S_WS, 10)
    add64(k, sFL, S_WS, FLAG_OFF)
    add64(k, sXB, S_WS, X_OFF)
    k(f"""s_lshl_b32 s10, s4, 8
    s_lshl_b32 s11, s{sJ}, 7
    s_add_u32 s10, s10, s11
    s_add_u32 s{sKF}, s10, {F_KMF}""")

def par_bases(k):
    k(f"""s_lshl_b32 s10, s{sPAR}, 13
    s_add_u32 s10, s10, {XAG_OFF}
    s_mul_i32 s11, s{sJ}, {3*16384}
    s_add_u32 s11, s11, s10""")
    add64s(k, sXAO, sXB, 11)
    k(f"""s_xor_b32 s11, s{sJ}, 1
    s_mul_i32 s11, s11, {3*16384}
    s_add_u32 s11, s11, s10""")
    add64s(k, sXAI, sXB, 11)

def x_bases(k):
    k(f"""s_and_b32 s10, s{sS}, 1
    s_lshl_b32 s10, s10, 19
    s_lshl_b32 s11, s{sPAR}, 13
    s_add_u32 s10, s10, s11
    s_lshl_b32 s11, s4, 14
    s_add_u32 s10, s10, s11
    s_lshl_b32 s11, s{sJ}, 12
    s_add_u32 s56, s10, s11
    s_xor_b32 s11, s11, 4096
    s_add_u32 s57, s10, s11""")
    add64s(k, sXO, sXB, 56); add64s(k, sXI, sXB, 57)
    k(f"""s_lshr_b32 s{sTX}, s{sS}, 1
    s_and_b32 s{sTX}, s{sTX}, 1
    s_and_b32 s{sTR}, s{sS}, 1""")

def spin(k, lbl_retry):
    k(f"""s_add_u32 s{sSPIN}, s{sSPIN}, 1
    s_cmp_lt_u32 s{sSPIN}, {SPIN_LIMIT}
    s_cbranch_scc1 {lbl_retry}
    s_branch L_timeout""")

def fold(a, b):
    r = [f"v_permlane32_swap_b32 v{a+i}, v{b+i}" for i in range(4)]
    r += [f"v_pk_add_f32 {vr(a,2)}, {vr(a,2)}, {vr(b,2)}", f"v_pk_add_f32 {vr(a+2,2)}, {vr(a+2,2)}, {vr(b+2,2)}"]
    return r

def interleave(k, mf, va, start, per=2):
    vi = 0
    for i, m in enumerate(mf):
        k(m)
        if i + 1 >= start:
            for _ in range(per):
                if vi < len(va): k(va[vi]); vi += 1
    while vi < len(va): k(va[vi]); vi += 1

def stamp(k, name, cfg):
    if cfg.get('stamps') == 2 and name in cfg['st']:
        i = cfg['st'].index(name)
        k(f"s_memtime s[{76+2*i}:{77+2*i}]")

def nops(k, cyc):
    for _ in range(cyc // 64): k("s_nop 15")
    r = (cyc % 64) // 4
    if r: k(f"s_nop {r-1}")

def sentinel_check(k, base, n, ok, full=False):
    if full:
        k(f"v_max3_u32 v{vT0}, v{base}, v{base+1}, v{base+2}")
        i = 3
        while i + 1 < n:
            k(f"v_max3_u32 v{vT0}, v{vT0}, v{base+i}, v{base+i+1}"); i += 2
        if i < n: k(f"v_max_u32 v{vT0}, v{vT0}, v{base+i}")
    else:
        k(f"v_max3_u32 v{vT0}, v{base}, v{base+4}, v{base+8}")
        k(f"v_max3_u32 v{vT0}, v{vT0}, v{base+12}, v{base+16}")
    k(f"v_cmp_eq_u32 vcc, -1, v{vT0}\ns_cbranch_vccz {ok}")

def SM(acc, a, w): return f"v_smfmac_f32_16x16x64_bf16 {vr(acc,4)}, {vr(a,4)}, {w}, v{vIDX}"

def rec_role(k, cfg):
    total_init = cfg.get('total_init', 64)
    NSTEP = cfg.get('nstep', 64)
    k.label('L_rec')
    k(f"s_mov_b32 s{sJ}, s3\ns_mov_b32 s{sPAR}, {cfg.get('par', 0)}")
    addr_setup(k)
    par_bases(k)
    k("v_mov_b32 v20, -1\nv_mov_b32 v21, -1\nv_mov_b32 v22, -1\nv_mov_b32 v23, -1")
    for slot in range(2):
        for par in range(2):
            k(f"s_lshl_b32 s56, s4, 14\ns_lshl_b32 s57, s{sJ}, 12\ns_add_u32 s56, s56, s57\ns_add_u32 s56, s56, {slot*XV_SLOT + par*8192}")
            add64s(k, 58, sXB, 56)
            k(f"global_store_dwordx4 v{vXL}, v[20:23], s[58:59] sc1")
    k(f"""global_store_dwordx4 v{vRS01}, v[20:23], s[{sRS}:{sRS+1}]
    global_store_dwordx4 v{vRS01}, v[20:23], s[{sRS2}:{sRS2+1}]
    s_mov_b64 exec, s[{sMLO}:{sMLO+1}]
    global_store_dwordx4 v{vRS4}, v[20:23], s[{sRS}:{sRS+1}]
    s_mov_b64 exec, -1""")
    lnr = k.new('L_nr')
    k(f"s_cmp_eq_u32 s{sRED}, 0\ns_cbranch_scc1 {lnr}\ns_mov_b64 exec, s[{sM4}:{sM4+1}]")
    for sl in range(3):
        add64(k, 58, sAGB, sl*AG_SLOT)
        k(f"global_store_dword v{vAGO}, v20, s[58:59]")
        for par in range(2):
            k(f"s_mul_i32 s56, s{sJ}, {3*16384}\ns_add_u32 s56, s56, {XAG_OFF + sl*16384 + par*8192}")
            add64s(k, 58, sXB, 56)
            k(f"global_store_dword v{vAGO}, v20, s[58:59] sc1")
    k(f"s_mov_b64 exec, -1\n{lnr}:")
    lkz = k.new('L_kz')
    k(f"""s_cmp_eq_u32 s5, 0
    s_cbranch_scc0 {lkz}
    v_mov_b32 v24, s{sKF}
    v_mov_b32 v25, 0
    s_mov_b64 exec, 1
    global_store_dword v24, v25, s[{sFL}:{sFL+1}] sc1
    s_mov_b64 exec, -1
    {lkz}:""")
    signal_init(k, 24, 25)
    load_weights(k)
    k(f"""s_load_dwordx2 s[10:11], s[0:1], {ARG['A_mem0']}
    v_and_b32 v60, 7, v0
    v_mul_u32_u24 v60, 1280, v60
    v_lshrrev_b32 v61, 4, v0
    v_lshlrev_b32 v61, 5, v61
    v_bfe_u32 v62, v0, 3, 1
    v_lshl_add_u32 v61, v62, 4, v61
    v_add_u32 v60, v60, v61
    s_xor_b32 s57, s{sJ}, 1
    s_mul_i32 s57, s57, 640
    v_add_u32 v61, s57, v60
    s_mul_i32 s56, s{sJ}, 640
    v_add_u32 v60, s56, v60
    s_waitcnt lgkmcnt(0)""")
    for b in range(5):
        k(f"global_load_dwordx4 {vr(mA+4*b,4)}, v60, s[10:11] offset:{128*b}")
        k(f"global_load_dwordx4 {vr(mB+4*b,4)}, v61, s[10:11] offset:{128*b}")
    wait_init(k, total_init, 62, 63, sSPIN)
    lf = k.new('L_f0'); lfo = k.new('L_f0ok')
    k(f"""s_mov_b32 s{sSPIN}, 0
    {lf}:
    global_load_dword v{vT0}, v{vFL}, s[{sFL}:{sFL+1}] sc1
    s_waitcnt vmcnt(0)
    v_cmp_gt_u32 vcc, 2, v{vT0}
    s_cbranch_vccz {lfo}""")
    spin(k, lf)
    k(f"{lfo}:")
    k(f"s_lshl_b32 s10, s4, 14\ns_add_u32 s10, s10, {KV_OFF}")
    add64s(k, sKV, S_WS, 10)
    k(f"""s_lshl_b32 s10, s5, 12
    s_add_u32 s{sM0}, s10, {KVS}
    s_mov_b32 m0, s{sM0}
    s_nop 0""")
    for i in range(4):
        k(f"global_load_lds_dwordx4 v{vDMA}, s[{sKV}:{sKV+1}] offset:{1024*i} sc1")
    add64(k, sKV, sKV, 32*16384)
    k(f"s_lshl_b32 s10, s4, 12\ns_add_u32 s10, s10, {KM_OFF}")
    add64s(k, sKM, S_WS, 10)
    k(f"s_mov_b32 s{sS}, 0\ns_mov_b32 s{sSLOT}, 1")
    for r in range(aQ0, aV1+4, 2): k(f"v_mov_b64 {vr(r,2)}, 0")
    k("s_waitcnt vmcnt(0) lgkmcnt(0)\ns_barrier")
    if cfg.get('stamps'):
        k("s_memtime s[96:97]\ns_memrealtime s[98:99]\ns_waitcnt lgkmcnt(0)")
        for r in range(76, 80): k(f"s_mov_b32 s{r}, 0")
    x_bases(k)
    def wv_read(i):
        d = WVl + 8*(i & 1)
        return [f"ds_read_b128 {vr(d,4)}, v{vWV} offset:{(i*2)*1024}", f"ds_read_b128 {vr(d+4,4)}, v{vWV} offset:{(i*2+1)*1024}"]
    for x in wv_read(0) + wv_read(1): k(x)
    k("s_branch L_have_m")

    k.label('L_step')
    la = k.new('L_ap'); lao = k.new('L_aok')
    stamp(k, 'ag_bar', cfg)
    if cfg.get('ag_delay'): nops(k, cfg['ag_delay'])
    for x in wv_read(0) + wv_read(1): k(x)
    k(f"s_mov_b32 s{sSPIN}, 0\n{la}:")
    for b in range(5):
        k(f"global_load_dwordx4 {vr(mA+4*b,4)}, v{vL16}, s[{sAG}:{sAG+1}] offset:{1024*b-2048} sc1")
    k("s_waitcnt vmcnt(0)")
    stamp(k, 'ag_ld', cfg)
    sentinel_check(k, mA, 20, lao)
    spin(k, la)
    k(f"{lao}:")
    if cfg.get("stamps") == 1: k("s_add_u32 s76, s76, s41")
    stamp(k, 'agown', cfg)
    k.label('L_have_m')
    stamp(k, 'start', cfg)
    k(f"s_mov_b32 s{sSLOWF}, 0")
    def rem_loads():
        l = k.new('L_norem')
        k(f"s_cmp_eq_u32 s{sS}, 0\ns_cbranch_scc1 {l}")
        for b in range(5):
            k(f"global_load_dwordx4 {vr(mB+4*b,4)}, v{vL16}, s[{sAGI}:{sAGI+1}] offset:{1024*b-2048} sc1")
        k(f"{l}:")
    rem_at = cfg.get('rem_at', 0)
    for i in range(10):
        b, t = i >> 1, i & 1
        if i == rem_at: rem_loads()
        k(f"s_waitcnt lgkmcnt({2 if i < 9 else 0})")
        k(SM(aV0 if t == 0 else aV1, mA+4*b, vr(WVl + 8*(i & 1), 8)))
        if i + 2 < 10:
            for x in wv_read(i+2): k(x)
        k(SM(aQ0 if t == 0 else aQ1, mA+4*b, wq(True, t, b)))
    Ko = [SM(a, mA+4*b, wk(True, t, b)) for b in range(5) for t, a in ((0,aK0),(1,aK1))]
    fv = fold(aV0, aV1) + [f"v_and_or_b32 v{aV0}, v{aV0}, -2, s{sTX}", f"global_store_dwordx4 v{vXL}, {vr(aV0,4)}, s[{sXO}:{sXO+1}] sc1"]
    interleave(k, Ko, fv, 2)
    stamp(k, 'own_done', cfg)
    lb = k.new('L_bp'); lbo = k.new('L_bok')
    k(f"""s_mov_b32 s{sSPIN}, 0
    s_cmp_eq_u32 s{sS}, 0
    s_cbranch_scc1 {lbo}
    s_waitcnt vmcnt(1)
    s_mov_b32 s{sSPIN}, 0
    {lb}:""")
    sentinel_check(k, mB, 20, lbo)
    for b in range(5):
        k(f"global_load_dwordx4 {vr(mB+4*b,4)}, v{vL16}, s[{sAGI}:{sAGI+1}] offset:{1024*b-2048} sc1")
    k("s_waitcnt vmcnt(0)")
    spin(k, lb)
    k(f"{lbo}:")
    if cfg.get("stamps") == 1: k("s_add_u32 s77, s77, s41")
    stamp(k, 'rem_ok', cfg)
    Qr = [SM(a, mB+4*b, wq(False, t, b)) for b in range(5) for t, a in ((0,aQ0),(1,aQ1))]
    Kr = [SM(a, mB+4*b, wk(False, t, b)) for b in range(5) for t, a in ((0,aK0),(1,aK1))]
    kxr = []
    for u in range(4):
        kxr.append(f"ds_read_b128 {vr(KX1[u],4)}, v{vKXA} offset:{u*1024}")
        kxr.append(f"ds_read_b128 {vr(KX2[u],4)}, v{vKXA} offset:{4096+u*1024}")
    fq = fold(aQ0, aQ1) + [f"v_pk_mul_f32 {vr(aQ0,2)}, {vr(aQ0,2)}, s[{sC}:{sC+1}]", f"v_pk_mul_f32 {vr(aQ0+2,2)}, {vr(aQ0+2,2)}, s[{sC}:{sC+1}]",
                           f"v_cvt_pk_bf16_f32 v{PKQ}, v{aQ0}, v{aQ0+1}", f"v_cvt_pk_bf16_f32 v{PKQ+1}, v{aQ0+2}, v{aQ0+3}",
                           f"ds_write_b64 v{vTW}, {vr(PKQ,2)}"]
    def vload_dma():
        k(f"global_load_dwordx4 {vr(XRv,4)}, v{vXL}, s[{sXI}:{sXI+1}] sc1")
        lw3 = k.new('L_w3l')
        k(f"""s_cmp_eq_u32 s5, 3
        s_cbranch_scc0 {lw3}
        global_load_dword v{vT1}, v{vFL}, s[{sFL}:{sFL+1}] sc1
        {lw3}:""")
        if cfg.get('dma_late'): return
        dma()
    def dma():
        if cfg.get('nodma'): return
        lnod = k.new('L_nodma')
        k(f"s_cmp_ge_u32 s{sS}, {NSTEP-1}\ns_cbranch_scc1 {lnod}")
        k(f"s_xor_b32 s{sM0}, s{sM0}, 16384\ns_mov_b32 m0, s{sM0}\ns_nop 0")
        for i in range(4):
            k(f"global_load_lds_dwordx4 v{vDMA}, s[{sKV}:{sKV+1}] offset:{1024*i} {cfg.get('dmafl','sc1')}")
        add64(k, sKV, sKV, 0 if cfg.get('dma_same') else 32*16384)
        k(f"{lnod}:")
    v_at = cfg.get('v_at', 10)
    seq = []
    for i, m in enumerate(Qr): seq.append([m] + ([kxr[i-1]] if 1 <= i <= 8 else []))
    fi = 0
    for i, m in enumerate(Kr):
        ex = []
        if i >= 2:
            ex = fq[fi:fi+2]; fi += 2
        seq.append([m] + ex)
    assert fi >= len(fq)
    for i, grp in enumerate(seq):
        if i == v_at: vload_dma()
        for x in grp: k(x)
    if v_at == 20: vload_dma()
    for x in fold(aK0, aK1): k(x)
    k(f"""v_cvt_pk_bf16_f32 v{PKK}, v{aK0}, v{aK0+1}
    v_cvt_pk_bf16_f32 v{PKK+1}, v{aK0+2}, v{aK0+3}
    ds_write_b64 v{vTW}, {vr(PKK,2)} offset:576""")
    k(f"s_cmp_ge_u32 s{sS}, {NSTEP-1}\ns_cbranch_scc1 L_last")
    if v_at == 21: vload_dma()
    k("s_waitcnt lgkmcnt(0)\ns_barrier")
    stamp(k, 'img_bar', cfg)
    for u in range(4):
        for z in range(2):
            k(f"ds_read_b64_tr_b16 {vr(XO+4*u+2*z,2)}, v{vTR} offset:{u*IMG_U + z*16}")
    if v_at == 22: vload_dma()
    k(f"v_mov_b64 {vr(VM0,2)}, 0\nv_xor_b32 v{vKXA}, 16384, v{vKXA}")
    for u in range(4):
        k(f"s_waitcnt lgkmcnt({6-2*u})")
        c0 = '0' if u == 0 else vr(T0,4); c1 = '0' if u == 0 else vr(T1,4); c2 = '0' if u == 0 else vr(T2,4)
        k(f"v_mfma_f32_16x16x32_bf16 {vr(T1,4)}, {vr(KX1[u],4)}, {vr(XO+4*u,4)}, {c1}")
        k(f"v_mfma_f32_16x16x32_bf16 {vr(T2,4)}, {vr(KX2[u],4)}, {vr(XO+4*u,4)}, {c2}")
        k(f"v_mfma_f32_16x16x32_bf16 {vr(T0,4)}, {vr(XO+4*u,4)}, {vr(XO+4*u,4)}, {c0}")
    lv = k.new('L_vp'); lvo = k.new('L_vok')
    k(f"""s_mov_b32 s{sSPIN}, 0
    s_waitcnt vmcnt({0 if (cfg.get('dma_late') or cfg.get('nodma')) else 4})
    {lv}:
    v_xor_b32 v{vT0}, s{sTX}, v{XRv}
    v_and_b32 v{vT0}, 1, v{vT0}
    v_cmp_ne_u32 vcc, 0, v{vT0}
    s_cbranch_vccz {lvo}
    global_load_dwordx4 {vr(XRv,4)}, v{vXL}, s[{sXI}:{sXI+1}] sc1
    s_waitcnt vmcnt(0)""")
    spin(k, lv)
    k(f"{lvo}:")
    if cfg.get("stamps") == 1: k("s_add_u32 s78, s78, s41")
    lw = k.new('L_w3'); lwo = k.new('L_w3ok')
    k(f"""s_cmp_eq_u32 s5, 3
    s_cbranch_scc0 {lwo}
    s_add_u32 s10, s{sS}, 3
    s_min_u32 s10, s10, {NSTEP}
    s_mov_b32 s{sSPIN}, 0
    {lw}:
    v_cmp_gt_u32 vcc, s10, v{vT1}
    s_cbranch_vccz {lwo}
    global_load_dword v{vT1}, v{vFL}, s[{sFL}:{sFL+1}] sc1
    s_waitcnt vmcnt(0)""")
    spin(k, lw)
    k(f"{lwo}:")
    k(f"""v_pk_add_f32 {vr(aV0,2)}, {vr(aV0,2)}, {vr(XRv,2)}
    v_pk_add_f32 {vr(aV0+2,2)}, {vr(aV0+2,2)}, {vr(XRv+2,2)}
    v_cvt_pk_bf16_f32 v{VM1}, v{aV0}, v{aV0+1}
    v_cvt_pk_bf16_f32 v{VM1+1}, v{aV0+2}, v{aV0+3}""")
    k(f"v_mov_b32 v{PUB}, v{VM1}\nv_mov_b32 v{PUB+1}, v{VM1+1}")
    lpk = k.new('L_pk')
    k(f"s_cmp_eq_u32 s{sJ}, 0\ns_cbranch_scc0 {lpk}\nv_mov_b32 v{PUB}, v{PKK}\nv_mov_b32 v{PUB+1}, v{PKK+1}\n{lpk}:")
    if cfg.get('dma_late'): dma()
    k(f"ds_read_b128 {vr(VX,4)}, v{vVXA}\nds_read_b128 {vr(VX+4,4)}, v{vVXA} offset:1024")
    k(f"v_permlane32_swap_b32 v{VM0}, v{VM1}\nv_permlane32_swap_b32 v{VM0+1}, v{VM1+1}")
    stamp(k, 'S_done', cfg)
    k.label('L_exp')
    for i in range(4): k(f"v_exp_f32 v{E1+i}, v{T1+i}")
    for i in range(4): k(f"v_exp_f32 v{E2+i}, v{T2+i}")
    for i in range(4): k(f"v_exp_f32 v{E0+i}, v{T0+i}")
    k(f"""v_cvt_pk_bf16_f32 v{P12}, v{E1}, v{E1+1}
    v_cvt_pk_bf16_f32 v{P12+1}, v{E1+2}, v{E1+3}
    v_cvt_pk_bf16_f32 v{P12+2}, v{E2}, v{E2+1}
    v_cvt_pk_bf16_f32 v{P12+3}, v{E2+2}, v{E2+3}
    v_cvt_pk_bf16_f32 v{P0}, v{E0}, v{E0+1}
    v_cvt_pk_bf16_f32 v{P0+1}, v{E0+2}, v{E0+3}
    s_waitcnt lgkmcnt(0)
    v_mfma_f32_16x16x32_bf16 {vr(OT0,4)}, {vr(VX,4)}, {vr(P12,4)}, 0
    v_cndmask_b32 v{P0}, 0, v{P0}, s[{sMG}:{sMG+1}]
    v_cndmask_b32 v{P0+1}, 0, v{P0+1}, s[{sMG}:{sMG+1}]
    v_mfma_f32_16x16x32_bf16 {vr(OT1,4)}, {vr(VX+4,4)}, {vr(P12,4)}, 0
    v_add_f32 v{vT0}, v{E0}, v{E0+1}
    v_add_f32 v{vT1}, v{E0+2}, v{E0+3}
    v_mfma_f32_16x16x16_bf16 {vr(OT0,4)}, {vr(VM0,2)}, {vr(P0,2)}, {vr(OT0,4)}
    v_add_f32 v{vT0}, v{vT0}, v{vT1}
    v_pk_add_f32 {vr(OP,2)}, {vr(E1,2)}, {vr(E1+2,2)}
    v_mfma_f32_16x16x16_bf16 {vr(OT1,4)}, {vr(VM1,2)}, {vr(P0,2)}, {vr(OT1,4)}
    v_cndmask_b32 v{vT0}, 0, v{vT0}, s[{sMG}:{sMG+1}]
    v_pk_add_f32 {vr(OP+2,2)}, {vr(E2,2)}, {vr(E2+2,2)}
    v_pk_add_f32 {vr(OP,2)}, {vr(OP,2)}, {vr(OP+2,2)}
    v_add_f32 v{vT0}, v{vT0}, v{OP}
    v_add_f32 v{vT0}, v{vT0}, v{OP+1}""")
    for i in range(4): k(f"v_cvt_pk_bf16_f32 v{OP+i}, v{OT0+i}, v{OT1+i}")
    k(f"""ds_write_b128 v{vOW}, {vr(OP,4)}
    v_mov_b32 v{vT1}, v{vT0}
    v_permlane32_swap_b32 v{vT0}, v{vT1}
    v_add_f32 v{vT0}, v{vT0}, v{vT1}
    v_mov_b32 v{vT1}, v{vT0}
    v_permlane16_swap_b32 v{vT0}, v{vT1}
    v_add_f32 v{vT0}, v{vT0}, v{vT1}
    v_subrev_u32 v{vT1}, {0x2b800000}, v{vT0}
    v_rcp_f32 v{vT0}, v{vT0}
    v_cmp_lt_u32 vcc, {0x28000000}, v{vT1}
    s_and_b64 vcc, vcc, s[{sMV}:{sMV+1}]
    s_cbranch_vccnz L_slow
    L_norm:""")
    if not cfg.get('nopub'):
        k(f"global_store_dwordx2 v{vKM}, {vr(PUB,2)}, s[{sKM}:{sKM+1}] sc1")
    lrr = k.new('L_norr')
    k(f"""s_cmp_eq_u32 s{sRED}, 0
    s_cbranch_scc1 {lrr}
    s_add_u32 s10, s{sSLOT}, 1
    s_cmp_eq_u32 s10, 3
    s_cselect_b32 s10, 0, s10
    s_lshl_b32 s11, s10, 14""")
    add64s(k, sTMP+4, sXAO, 11)
    k(f"""s_lshl_b32 s11, s10, 13""")
    add64s(k, sAGR, sAGB, 11)
    k(f"""v_mov_b32 v{vT1}, -1
    s_mov_b64 exec, s[{sM4}:{sM4+1}]
    global_store_dword v{vAGO}, v{vT1}, s[{sTMP+4}:{sTMP+5}] sc1
    global_store_dword v{vAGO}, v{vT1}, s[{sAGR}:{sAGR+1}]
    s_mov_b64 exec, -1
    {lrr}:""")
    k(f"""s_waitcnt lgkmcnt(0)
    s_barrier
    ds_read_b128 {vr(WoA,4)}, v{vL16} offset:{OIMG}
    ds_read_b128 {vr(WoA+4,4)}, v{vL16} offset:{OIMG+1024}""")
    for i in range(4):
        k(f"ds_bpermute_b32 v{RL+i}, v{vBP}, v{vT0} offset:{4*i}")
    for r in range(aW, aW+24, 2): k(f"v_mov_b64 {vr(r,2)}, 0")
    k(f"v_xor_b32 v{vVXA}, 16384, v{vVXA}")
    lkf = k.new('L_nokf')
    if not (cfg.get('nopub') or cfg.get('noflag')): k(f"""s_cmp_eq_u32 s{sS}, 0
    s_cbranch_scc1 {lkf}
    s_cmp_eq_u32 s5, 0
    s_cbranch_scc0 {lkf}
    v_mov_b32 v{OP}, s{sKF}
    v_mov_b32 v{OP+1}, s{sS}
    s_mov_b64 exec, 1
    global_store_dword v{OP}, v{OP+1}, s[{sFL}:{sFL+1}] sc1
    s_mov_b64 exec, -1
    {lkf}:""")
    stamp(k, 'O_bar', cfg)
    for b in range(2):
        k(f"s_waitcnt lgkmcnt({5-b})")
        for t in range(5):
            k(SM(aW+4*t, WoA+4*b, wo(t, b)))
    k("s_waitcnt lgkmcnt(0)")
    def scale(a): return [f"v_pk_mul_f32 {vr(a,2)}, {vr(a,2)}, {vr(RL,2)}", f"v_pk_mul_f32 {vr(a+2,2)}, {vr(a+2,2)}, {vr(RL+2,2)}"]
    for (a, b_, base) in ((aW, aW+4, sRS), (aW+8, aW+12, sRS2)):
        for x in fold(a, b_) + scale(a): k(x)
        k(f"v_and_or_b32 v{a}, v{a}, -2, s{sTR}")
        k(f"global_store_dwordx4 v{vRS01}, {vr(a,4)}, s[{base}:{base+1}]")
    for x in fold(aW+16, ZQ) + scale(aW+16): k(x)
    k(f"""v_and_or_b32 v{aW+16}, v{aW+16}, -2, s{sTR}
    s_mov_b64 exec, s[{sMLO}:{sMLO+1}]
    global_store_dwordx4 v{vRS4}, {vr(aW+16,4)}, s[{sRS}:{sRS+1}]
    s_mov_b64 exec, -1""")
    stamp(k, 'rs_st', cfg)
    for r in range(aQ0, aV1+4, 2): k(f"v_mov_b64 {vr(r,2)}, 0")
    k(f"s_lshl_b32 s10, s{sSLOT}, 13")
    add64s(k, sTMP+2, sAGB, 10)
    add64(k, sAG, sTMP+2, 2048)
    k(f"s_lshl_b32 s10, s{sSLOT}, 14")
    add64s(k, sAGX, sXAO, 10)
    add64s(k, sAGI, sXAI, 10); add64(k, sAGI, sAGI, 2048)
    k(f"s_mov_b32 s{sTR2}, s{sTR}")
    k(f"s_add_u32 s{sS}, s{sS}, 1")
    add64(k, sKM, sKM, 32*4096)
    x_bases(k)
    k(f"""s_add_u32 s{sSLOT}, s{sSLOT}, 1
    s_cmp_eq_u32 s{sSLOT}, 3
    s_cselect_b32 s{sSLOT}, 0, s{sSLOT}""")
    lred = k.new('L_nored'); lr = k.new('L_rp'); lro = k.new('L_rok')
    lnr2 = k.new('L_nr2')
    k(f"s_cmp_eq_u32 s{sRED}, 0\ns_cbranch_scc0 {lnr2}\ns_waitcnt vmcnt(0)\ns_branch {lred}\n{lnr2}:")
    if cfg.get('rs_delay'): nops(k, cfg['rs_delay'])
    k(f"s_mov_b32 s{sSPIN}, 0\n{lr}:")
    for i in range(4):
        k(f"global_load_dwordx4 {vr(RSR+4*i,4)}, v{vRSIN}, s[{sRS}:{sRS+1}] offset:{1024*i} sc1")
    k("s_waitcnt vmcnt(0)")
    stamp(k, 'rs_ld', cfg)
    k(f"""v_bitop3_b32 v{vT0}, v{RSR}, v{RSR+4}, s{sTR2} bitop3:0x7e
    v_bitop3_b32 v{vT1}, v{RSR+8}, v{RSR+12}, s{sTR2} bitop3:0x7e
    v_or_b32 v{vT0}, v{vT0}, v{vT1}
    v_and_b32 v{vT0}, 1, v{vT0}
    v_cmp_ne_u32 vcc, 0, v{vT0}
    s_cbranch_vccz {lro}""")
    spin(k, lr)
    k(f"{lro}:")
    if cfg.get("stamps") == 1: k("s_add_u32 s79, s79, s41")
    stamp(k, 'rs_ok', cfg)
    k(f"""v_pk_add_f32 {vr(RSR,2)}, {vr(RSR,2)}, {vr(RSR+4,2)}
    v_pk_add_f32 {vr(RSR+8,2)}, {vr(RSR+8,2)}, {vr(RSR+12,2)}
    v_pk_add_f32 {vr(RSR+2,2)}, {vr(RSR+2,2)}, {vr(RSR+6,2)}
    v_pk_add_f32 {vr(RSR+10,2)}, {vr(RSR+10,2)}, {vr(RSR+14,2)}
    v_pk_add_f32 {vr(RSR,2)}, {vr(RSR,2)}, {vr(RSR+8,2)}
    v_pk_add_f32 {vr(RSR+2,2)}, {vr(RSR+2,2)}, {vr(RSR+10,2)}
    v_permlane32_swap_b32 v{RSR}, v{RSR+1}
    v_permlane32_swap_b32 v{RSR+2}, v{RSR+3}
    v_add_f32 v{RSR}, v{RSR}, v{RSR+1}
    v_add_f32 v{RSR+2}, v{RSR+2}, v{RSR+3}
    v_permlane16_swap_b32 v{RSR}, v{RSR+2}
    v_add_f32 v{RSR}, v{RSR}, v{RSR+2}
    v_add_f32_dpp v{RSR}, v{RSR}, v{RSR} row_ror:8 row_mask:0xf bank_mask:0xf
    v_mov_b32_dpp v{RSR+1}, v{RSR} row_shl:4 row_mask:0xf bank_mask:0xf
    v_cvt_pk_bf16_f32 v{RSR}, v{RSR}, v{RSR+1}
    s_mov_b64 exec, s[{sM4}:{sM4+1}]
    global_store_dword v{vAGO}, v{RSR}, s[{sAGX}:{sAGX+1}] sc1
    global_store_dword v{vAGO}, v{RSR}, s[{sTMP+2}:{sTMP+3}]
    s_mov_b64 exec, -1
    {lred}:""")
    stamp(k, 'pub', cfg)
    if cfg.get('stamps') == 2:
        k("s_waitcnt lgkmcnt(0)")
        for i in range(8): k(f"v_writelane_b32 v{cfg['vstamp']}, s{76+2*i}, {i}")
        k(f"""s_lshl_b32 s10, s3, 5
        s_add_u32 s10, s10, s4
        s_lshl_b32 s10, s10, 2
        s_add_u32 s10, s10, s5
        s_lshl_b32 s10, s10, 6
        s_add_u32 s10, s10, s{sS}
        s_sub_u32 s10, s10, 1
        s_lshl_b32 s10, s10, 5
        s_add_u32 s10, s10, {STAMP_OFF}
        v_lshl_add_u32 v{vT0}, v0, 2, s10
        s_mov_b64 exec, 0xff
        global_store_dword v{vT0}, v{cfg['vstamp']}, s[8:9]
        s_mov_b64 exec, -1""")
    if cfg.get('ag_barrier', True): k("s_barrier")
    k("s_branch L_step")

    k.label('L_slow')
    k(f"""s_cmp_eq_u32 s{sSLOWF}, 1
    s_cbranch_scc1 L_norm
    s_mov_b32 s{sSLOWF}, 1
    v_max3_f32 v{vT0}, v{T0}, v{T0+1}, v{T0+2}
    v_max_f32 v{vT0}, v{vT0}, v{T0+3}
    v_mov_b32 v{vT1}, 0xff800000
    v_cndmask_b32 v{vT0}, v{vT1}, v{vT0}, s[{sMG}:{sMG+1}]
    v_max3_f32 v{vT0}, v{vT0}, v{T1}, v{T1+1}
    v_max3_f32 v{vT0}, v{vT0}, v{T1+2}, v{T1+3}
    v_max3_f32 v{vT0}, v{vT0}, v{T2}, v{T2+1}
    v_max3_f32 v{vT0}, v{vT0}, v{T2+2}, v{T2+3}
    v_mov_b32 v{vT1}, v{vT0}
    v_permlane32_swap_b32 v{vT0}, v{vT1}
    v_max_f32 v{vT0}, v{vT0}, v{vT1}
    v_mov_b32 v{vT1}, v{vT0}
    v_permlane16_swap_b32 v{vT0}, v{vT1}
    v_max_f32 v{vT0}, v{vT0}, v{vT1}""")
    for i in range(12): k(f"v_sub_f32 v{T0+i}, v{T0+i}, v{vT0}")
    k("s_branch L_exp")

    k.label('L_last')
    lv = k.new('L_lvp'); lvo = k.new('L_lvok')
    k(f"global_load_dwordx4 {vr(XRv,4)}, v{vXL}, s[{sXI}:{sXI+1}] sc1")
    k(f"""s_mov_b32 s{sSPIN}, 0
    s_waitcnt vmcnt(0)
    {lv}:
    v_xor_b32 v{vT0}, s{sTX}, v{XRv}
    v_and_b32 v{vT0}, 1, v{vT0}
    v_cmp_ne_u32 vcc, 0, v{vT0}
    s_cbranch_vccz {lvo}
    global_load_dwordx4 {vr(XRv,4)}, v{vXL}, s[{sXI}:{sXI+1}] sc1
    s_waitcnt vmcnt(0)""")
    spin(k, lv)
    k(f"""{lvo}:
    v_pk_add_f32 {vr(aV0,2)}, {vr(aV0,2)}, {vr(XRv,2)}
    v_pk_add_f32 {vr(aV0+2,2)}, {vr(aV0+2,2)}, {vr(XRv+2,2)}
    v_cvt_pk_bf16_f32 v{VM1}, v{aV0}, v{aV0+1}
    v_cvt_pk_bf16_f32 v{VM1+1}, v{aV0+2}, v{aV0+3}""")
    lp3 = k.new('L_pubv2'); lp4 = k.new('L_pubk2')
    k(f"""s_cmp_eq_u32 s{sJ}, 1
    s_cbranch_scc0 {lp4}
    global_store_dwordx2 v{vKM}, {vr(VM1,2)}, s[{sKM}:{sKM+1}] sc1
    s_branch {lp3}
    {lp4}:
    global_store_dwordx2 v{vKM}, {vr(PKK,2)}, s[{sKM}:{sKM+1}] sc1
    {lp3}:
    s_waitcnt vmcnt(0)
    s_barrier
    v_mov_b32 v{vT0}, s{sKF}
    v_mov_b32 v{vT1}, {NSTEP}
    s_cmp_eq_u32 s5, 0
    s_cbranch_scc0 L_lastdone
    s_mov_b64 exec, 1
    global_store_dword v{vT0}, v{vT1}, s[{sFL}:{sFL+1}] sc1
    s_mov_b64 exec, -1
    L_lastdone:""")
    if cfg.get('stamps'):
        k(f"""s_memtime s[84:85]
        s_memrealtime s[86:87]
        s_waitcnt lgkmcnt(0)
        s_sub_u32 s84, s84, s96
        s_sub_u32 s86, s86, s98
        s_lshl_b32 s10, s3, 5
        s_add_u32 s10, s10, s4
        s_lshl_b32 s10, s10, 2
        s_add_u32 s10, s10, s5
        s_lshl_b32 s10, s10, 5
        s_add_u32 s10, s10, {STAMP_OFF + 4*MB}
        v_mov_b32 v{vT0}, s10
        v_mov_b32 v20, s84
        v_mov_b32 v21, s86
        v_mov_b32 v22, s76
        v_mov_b32 v23, s77
        v_mov_b32 v24, s78
        v_mov_b32 v25, s79
        global_store_dwordx4 v{vT0}, v[20:23], s[8:9]
        global_store_dwordx2 v{vT0}, v[24:25], s[8:9] offset:16""")
    k("s_waitcnt vmcnt(0)\ns_endpgm")
```

```python
from proj import *

QIM = 0
KVS1 = 16384
KMS = 49152
S1_LDS = KMS + 4096
QB = 64; Tm, T0_, T1_ = 80, 84, 88
KX0, KX1_, KMA = 96, 112, 128
VXo = 144; VMo = 160; OA = 168
Pm = 184; P01 = 186
vQA, vKXA1, vVXA1, vKMT, vVMA, vOA, vKVD, vFL1, vNEG, vQD = 7, 8, 9, 10, 11, 12, 13, 14, 15, 16
vFQ, vFKM, vFV = 17, 18, 19
sM0m = 32
sM1m = 40
sMm = 48
sKVp = 50; sKMp = 52; sOp = 54; sQp = 56; sFO1 = 58; sBUF = 59

def poll_flags(k, need_sgpr, lanemask, vaddr, tag):
    l = k.new('L_pf'+tag); ok = k.new('L_pfo'+tag)
    k(f"""s_mov_b32 s{sPSPIN}, 0
    {l}:
    s_mov_b64 exec, {lanemask}
    global_load_dword v{pT0}, v{vaddr}, s[{sPFL}:{sPFL+1}] sc1
    s_waitcnt vmcnt(0)
    v_cmp_gt_u32 vcc, s{need_sgpr}, v{pT0}
    s_mov_b64 exec, -1
    s_cbranch_vccz {ok}
    s_sleep 1
    s_add_u32 s{sPSPIN}, s{sPSPIN}, 1
    s_cmp_lt_u32 s{sPSPIN}, {SPIN_LIMIT}
    s_cbranch_scc1 {l}
    s_branch L_timeout
    {ok}:""")

def s1_role(k, cfg):
    NSEG = cfg.get('nseg', 64)
    k.label('L_s1')
    add64(k, sPFL, S_WS, FLAG_OFF)
    k(f"s_lshl_b32 s{sFO1}, s4, 7\ns_add_u32 s{sFO1}, s{sFO1}, {F_OPROG}\ns_mov_b32 s30, 0")
    flag_store(k, sFO1, 30)
    signal_init(k, pT0, pT1)
    k(f"""v_lshlrev_b32 v{pL16}, 4, v0
    s_and_b32 s11, s5, 1                           ; rho_q
    s_lshr_b32 s12, s5, 1                          ; fh
    s_lshl_b32 s13, s11, 12
    s_add_u32 s13, s13, {QIM}
    v_add_u32 v{vQA}, s13, v{pL16}
    v_add_u32 v{vKXA1}, {KVS1}, v{pL16}
    s_lshl_b32 s13, s12, 12
    s_add_u32 s13, s13, {KVS1 + 8192}
    v_add_u32 v{vVXA1}, s13, v{pL16}
    v_lshrrev_b32 v{pT0}, 4, v0
    v_lshlrev_b32 v{pT0}, 2, v{pT0}
    v_bfe_u32 v{pT1}, v0, 3, 1
    v_add_u32 v{pT0}, v{pT0}, v{pT1}               ; 4g + (a>>1)
    v_lshlrev_b32 v{vKMT}, 3, v{pT0}
    v_and_b32 v{pT1}, 1, v0
    v_lshl_add_u32 v{vKMT}, v{pT1}, 7, v{vKMT}
    v_bfe_u32 v{pT1}, v0, 2, 1
    v_lshl_add_u32 v{vKMT}, v{pT1}, 8, v{vKMT}
    v_add_u32 v{vKMT}, {KMS}, v{vKMT}
    v_and_b32 v{pT0}, 31, v0
    v_lshlrev_b32 v{vVMA}, 3, v{pT0}
    s_lshl_b32 s13, s12, 10
    s_add_u32 s13, s13, {KMS + 2048}
    v_add_u32 v{vVMA}, s13, v{vVMA}
    s_lshl_b32 s13, s11, 17
    s_lshl_b32 s14, s4, 12
    s_add_u32 s13, s13, s14
    s_lshl_b32 s14, s12, 11
    s_add_u32 s13, s13, s14
    v_add_u32 v{vOA}, s13, v{pL16}
    s_lshl_b32 s13, s5, 12
    v_add_u32 v{vKVD}, s13, v{pL16}
    s_lshl_b32 s13, s5, 11
    v_add_u32 v{vQD}, s13, v{pL16}
    v_mov_b32 v{vNEG}, 0xff7fffff
    s_mov_b32 s{sMm}, -1
    s_mov_b32 s{sMm+1}, 0
    v_and_b32 v{pT0}, 3, v0
    v_lshlrev_b32 v{pT1}, 12, v{pT0}
    v_mov_b32 v20, {F_QPROG}
    v_cmp_eq_u32 vcc, 2, v{pT0}
    v_cndmask_b32 v{pT1}, v{pT1}, v20, vcc
    s_lshl_b32 s10, s4, 7
    v_add_u32 v{vFQ}, s10, v{pT1}
    v_and_b32 v{pT0}, 1, v0
    v_lshlrev_b32 v{pT1}, 7, v{pT0}
    s_lshl_b32 s10, s4, 8
    s_add_u32 s10, s10, {F_KMF}
    v_add_u32 v{vFKM}, s10, v{pT1}
    v_and_b32 v{pT0}, 15, v0
    v_lshrrev_b32 v{pT1}, 4, v0
    v_lshlrev_b32 v{pT1}, 2, v{pT1}                ; 4g""")
    for i in range(4):
        k(f"""v_add_u32 v20, {i}, v{pT1}
        v_cmp_le_u32 vcc, v20, v{pT0}
        s_nop 3
        s_cmp_eq_u32 s11, 0
        s_cselect_b64 s[{sM0m+2*i}:{sM0m+2*i+1}], vcc, -1
        s_cselect_b64 s[{sM1m+2*i}:{sM1m+2*i+1}], 0, vcc""")
    k(f"s_lshl_b32 s10, s4, 14\ns_add_u32 s10, s10, {KV_OFF}"); add64s(k, sKVp, S_WS, 10)
    k(f"s_lshl_b32 s10, s4, 13\ns_add_u32 s10, s10, {Q_OFF}"); add64s(k, sQp, S_WS, 10)
    k(f"s_lshl_b32 s10, s4, 12\ns_add_u32 s10, s10, {KM_OFF}"); add64s(k, sKMp, S_WS, 10)
    add64(k, sOp, S_WS, O_OFF)
    wait_init(k, cfg.get('total_init', 256), pT0, pT1, sPSPIN)
    def qkv_dma():
        k(f"""s_lshl_b32 s10, s5, 12
        s_lshl_b32 s11, s{sBUF}, 14
        s_add_u32 s10, s10, s11
        s_add_u32 m0, s10, {KVS1}
        s_nop 0""")
        for i in range(4): k(f"global_load_lds_dwordx4 v{vKVD}, s[{sKVp}:{sKVp+1}] offset:{1024*i} sc1")
        k(f"""s_lshl_b32 s10, s5, 11
        s_lshl_b32 s11, s{sBUF}, 13
        s_add_u32 s10, s10, s11
        s_add_u32 m0, s10, {QIM}
        s_nop 0""")
        for i in range(2): k(f"global_load_lds_dwordx4 v{vQD}, s[{sQp}:{sQp+1}] offset:{1024*i} sc1")
        add64(k, sKVp, sKVp, 32*16384); add64(k, sQp, sQp, 32*8192)
    k(f"s_mov_b32 s{sPS}, 0\ns_mov_b32 s{sBUF}, 0\ns_mov_b32 s30, 1")
    poll_flags(k, 30, 7, vFQ, 'q0')
    qkv_dma()
    def st(i):
        if cfg.get('pstamps'): k(f"s_memtime s[{60+2*i}:{61+2*i}]")
    if cfg.get('pstamps'):
        for r in range(80, 88): k(f's_mov_b32 s{r}, 0')
    k.label('L_s1_loop')
    st(0)
    k(f"s_add_u32 s30, s{sPS}, 1")
    poll_flags(k, 30, 3, vFKM, 'km')
    st(1)
    k(f"""s_lshl_b32 s10, s5, 10
    s_add_u32 m0, s10, {KMS}
    v_add_u32 v{pT0}, s10, v{pL16}
    global_load_lds_dwordx4 v{pT0}, s[{sKMp}:{sKMp+1}] sc1
    s_mov_b64 exec, 7
    global_load_dword v{vFV}, v{vFQ}, s[{sPFL}:{sPFL+1}] sc1
    s_mov_b64 exec, -1
    s_waitcnt vmcnt(0)
    s_barrier""")
    st(2)
    for u in range(4): k(f"ds_read_b128 {vr(QB+4*u,4)}, v{vQA} offset:{u*1024}")
    for u in range(4): k(f"ds_read_b128 {vr(KX0+4*u,4)}, v{vKXA1} offset:{u*1024}")
    for u in range(4): k(f"ds_read_b128 {vr(KX1_+4*u,4)}, v{vKXA1} offset:{4096+u*1024}")
    k("s_waitcnt lgkmcnt(4)")
    for u in range(4):
        c = '0' if u == 0 else vr(T0_,4)
        k(f"v_mfma_f32_16x16x32_bf16 {vr(T0_,4)}, {vr(KX0+4*u,4)}, {vr(QB+4*u,4)}, {c}")
        for z in range(2): k(f"ds_read_b64_tr_b16 {vr(KMA+4*u+2*z,2)}, v{vKMT} offset:{u*512 + z*16}")
    k("s_waitcnt lgkmcnt(8)")
    for u in range(4):
        c = '0' if u == 0 else vr(T1_,4)
        k(f"v_mfma_f32_16x16x32_bf16 {vr(T1_,4)}, {vr(KX1_+4*u,4)}, {vr(QB+4*u,4)}, {c}")
    k("s_waitcnt lgkmcnt(0)")
    for u in range(4):
        c = '0' if u == 0 else vr(Tm,4)
        k(f"v_mfma_f32_16x16x32_bf16 {vr(Tm,4)}, {vr(KMA+4*u,4)}, {vr(QB+4*u,4)}, {c}")
    for j in range(2):
        for t in range(2):
            k(f"ds_read_b128 {vr(VXo+4*(2*j+t),4)}, v{vVXA1} offset:{j*2048 + t*1024}")
            k(f"ds_read_b64 {vr(VMo+2*(2*j+t),2)}, v{vVMA} offset:{j*512 + t*256}")
    for i in range(4):
        k(f"v_cndmask_b32 v{T0_+i}, v{vNEG}, v{T0_+i}, s[{sM0m+2*i}:{sM0m+2*i+1}]")
        k(f"v_cndmask_b32 v{T1_+i}, v{vNEG}, v{T1_+i}, s[{sM1m+2*i}:{sM1m+2*i+1}]")
    for i in range(4):
        k(f"v_cndmask_b32 v{Tm+i}, v{vNEG}, v{Tm+i}, s[{sMm}:{sMm+1}]")
    k(f"v_max3_f32 v{pT0}, v{Tm}, v{Tm+1}, v{Tm+2}")
    for i in range(3, 11, 2): k(f"v_max3_f32 v{pT0}, v{pT0}, v{Tm+i}, v{Tm+i+1}")
    k(f"""v_max_f32 v{pT0}, v{pT0}, v{Tm+11}
    v_mov_b32 v{pT1}, v{pT0}
    v_permlane32_swap_b32 v{pT0}, v{pT1}
    v_max_f32 v{pT0}, v{pT0}, v{pT1}
    v_mov_b32 v{pT1}, v{pT0}
    v_permlane16_swap_b32 v{pT0}, v{pT1}
    v_max_f32 v{pT0}, v{pT0}, v{pT1}""")
    for i in range(12): k(f"v_sub_f32 v{Tm+i}, v{Tm+i}, v{pT0}")
    for i in range(12): k(f"v_exp_f32 v{Tm+i}, v{Tm+i}")
    k(f"""v_cvt_pk_bf16_f32 v{Pm}, v{Tm}, v{Tm+1}
    v_cvt_pk_bf16_f32 v{Pm+1}, v{Tm+2}, v{Tm+3}
    v_cvt_pk_bf16_f32 v{P01}, v{T0_}, v{T0_+1}
    v_cvt_pk_bf16_f32 v{P01+1}, v{T0_+2}, v{T0_+3}
    v_cvt_pk_bf16_f32 v{P01+2}, v{T1_}, v{T1_+1}
    v_cvt_pk_bf16_f32 v{P01+3}, v{T1_+2}, v{T1_+3}
    s_waitcnt lgkmcnt(0)
    s_barrier""")
    for q in range(4):
        k(f"v_mfma_f32_16x16x32_bf16 {vr(OA+4*q,4)}, {vr(VXo+4*q,4)}, {vr(P01,4)}, 0")
    for q in range(4):
        k(f"v_mfma_f32_16x16x16_bf16 {vr(OA+4*q,4)}, {vr(VMo+2*q,2)}, {vr(Pm,2)}, {vr(OA+4*q,4)}")
    k(f"v_pk_add_f32 {vr(Tm,2)}, {vr(Tm,2)}, {vr(Tm+2,2)}")
    k(f"v_pk_add_f32 {vr(T0_,2)}, {vr(T0_,2)}, {vr(T0_+2,2)}")
    k(f"v_pk_add_f32 {vr(T1_,2)}, {vr(T1_,2)}, {vr(T1_+2,2)}")
    k(f"v_pk_add_f32 {vr(Tm,2)}, {vr(Tm,2)}, {vr(T0_,2)}")
    k(f"v_pk_add_f32 {vr(Tm,2)}, {vr(Tm,2)}, {vr(T1_,2)}")
    k(f"""v_add_f32 v{pT0}, v{Tm}, v{Tm+1}
    v_mov_b32 v{pT1}, v{pT0}
    v_permlane32_swap_b32 v{pT0}, v{pT1}
    v_add_f32 v{pT0}, v{pT0}, v{pT1}
    v_mov_b32 v{pT1}, v{pT0}
    v_permlane16_swap_b32 v{pT0}, v{pT1}
    v_add_f32 v{pT0}, v{pT0}, v{pT1}
    v_rcp_f32 v20, v{pT0}""")
    for j in range(2):
        a0, a1 = OA + 8*j, OA + 8*j + 4
        for a in (a0, a1):
            k(f"v_pk_mul_f32 {vr(a,2)}, {vr(a,2)}, v[20:21] op_sel_hi:[1,0]\nv_pk_mul_f32 {vr(a+2,2)}, {vr(a+2,2)}, v[20:21] op_sel_hi:[1,0]")
        for i in range(4):
            k(f"v_cvt_pk_bf16_f32 v{pPK+4*j+i}, v{a0+i}, v{a1+i}")
        k(f"global_store_dwordx4 v{vOA}, {vr(pPK+4*j,4)}, s[{sOp}:{sOp+1}] offset:{j*1024} sc1")
    st(3)
    add64(k, sOp, sOp, 262144); add64(k, sKMp, sKMp, 32*4096)
    k(f"s_add_u32 s{sPS}, s{sPS}, 1\ns_cmp_ge_u32 s{sPS}, {NSEG}\ns_cbranch_scc1 L_s1_done")
    lk = k.new('L_kvok')
    k(f"""s_add_u32 s30, s{sPS}, 1
    s_mov_b64 exec, 7
    v_cmp_gt_u32 vcc, s30, v{vFV}
    s_mov_b64 exec, -1
    s_cbranch_vccz {lk}""")
    poll_flags(k, 30, 7, vFQ, 'kv')
    k(f"{lk}:\ns_xor_b32 s{sBUF}, s{sBUF}, 1")
    qkv_dma()
    k(f"""v_xor_b32 v{vQA}, 8192, v{vQA}
    s_lshl_b32 s10, s{sBUF}, 14
    v_add_u32 v{vKXA1}, {KVS1}, v{pL16}
    v_add_u32 v{vKXA1}, s10, v{vKXA1}
    s_lshr_b32 s11, s5, 1
    s_lshl_b32 s11, s11, 12
    s_add_u32 s10, s10, s11
    s_add_u32 s10, s10, {KVS1 + 8192}
    v_add_u32 v{vVXA1}, s10, v{pL16}
    s_waitcnt vmcnt(6)
    s_barrier
    s_mov_b32 s30, s{sPS}""")
    flag_store(k, sFO1, 30)
    st(4)
    if cfg.get('pstamps'):
        k("s_waitcnt lgkmcnt(0)")
        for i in range(4): k(f"s_sub_u32 s10, s{62+2*i}, s{60+2*i}\ns_add_u32 s{80+i}, s{80+i}, s10")
    k("s_branch L_s1_loop")
    k(f"L_s1_done:\ns_waitcnt vmcnt(0)\ns_barrier\ns_mov_b32 s30, {NSEG}")
    flag_store(k, sFO1, 30)
    if cfg.get('pstamps'):
        k(f"s_lshl_b32 s10, s4, 2\ns_add_u32 s10, s10, s5\ns_lshl_b32 s10, s10, 5\ns_add_u32 s10, s10, {STAMP_OFF}\nv_mov_b32 v1, s10")
        for i in range(4): k(f"v_mov_b32 v{4+i}, s{80+i}")
        k("global_store_dwordx4 v1, v[4:7], s[8:9]")
    k("s_waitcnt vmcnt(0)\ns_endpgm")
```

```python
from proj import *
from s1 import poll_flags

S2_RED = 0
S2_LDS = 16384
OF = 64
ACC = 40
OUTR = 48
vOL = 16
vRW, vOUT, vF2 = 7, 8, 9
sO2 = 32; sOUT = 34; sFO2 = 36; sPAR2 = 37; sSIG = 38; sBETA = 39

def s2_role(k, cfg):
    NSEG = cfg.get('nseg', 64)
    k.label('L_s2')
    add64(k, sPFL, S_WS, FLAG_OFF)
    signal_init(k, pT0, pT1)
    k(f"""s_lshl_b32 s30, s{sBETA}, 6
    s_mul_i32 s31, s5, {1024*1280}
    s_add_u32 s30, s30, s31""")
    load_w_nmajor(k, 'A_Wo', 32, 1280, 30, lambda kap, t: ('a', (kap*2+t)*4), land=(64, 96, 128), voff=200)
    k(f"""v_lshlrev_b32 v{pL16}, 4, v0
    s_lshl_b32 s10, s5, 15
    s_lshl_b32 s11, s{sSIG}, 17
    s_add_u32 s10, s10, s11""")
    for j in range(8): k(f"v_add_u32 v{vOL+j}, s10, v{pL16}\ns_add_u32 s10, s10, 4096")
    k(f"""s_lshl_b32 s10, s5, 11
    v_add_u32 v{vRW}, s10, v{pL16}                 ; w*2048 + lane*16
    v_and_b32 v{pT0}, 15, v0
    s_lshl_b32 s10, s{sSIG}, 4
    v_add_u32 v{pT0}, s10, v{pT0}
    v_mul_u32_u24 v{vOUT}, 5120, v{pT0}
    v_lshrrev_b32 v{pT0}, 4, v0
    v_lshl_add_u32 v{vOUT}, v{pT0}, 5, v{vOUT}
    s_lshl_b32 s10, s{sBETA}, 7
    v_add_u32 v{vOUT}, s10, v{vOUT}
    v_and_b32 v{pT0}, 7, v0
    s_lshl_b32 s10, s5, 3
    v_add_u32 v{pT0}, s10, v{pT0}
    v_lshlrev_b32 v{vF2}, 7, v{pT0}
    v_add_u32 v{vF2}, {F_OPROG}, v{vF2}
    s_load_dwordx2 s[{sOUT}:{sOUT+1}], s[0:1], {ARG['out']}
    s_waitcnt lgkmcnt(0)""")
    add64(k, sO2, S_WS, O_OFF)
    wait_init(k, cfg.get('total_init', 256), pT0, pT1, sPSPIN)
    k(f"s_mov_b32 s{sPS}, 0\ns_mov_b32 s{sPAR2}, 0")
    k.label('L_s2_loop')
    k(f"s_add_u32 s30, s{sPS}, 1")
    poll_flags(k, 30, 0xff, vF2, 's2')
    for f in range(32):
        k(f"global_load_dwordx4 {vr(OF+4*f,4)}, v{vOL+(f>>2)}, s[{sO2}:{sO2+1}] offset:{1024*(f&3)} sc1")
    for f in range(32):
        if f % 2 == 0: k(f"s_waitcnt vmcnt({30-f})")
        for t in range(2):
            c = '0' if f == 0 else vr(ACC+4*t,4)
            k(f"v_mfma_f32_16x16x32_bf16 {vr(ACC+4*t,4)}, {ar((f*2+t)*4,4)}, {vr(OF+4*f,4)}, {c}")
    k(f"""s_lshl_b32 s10, s{sPAR2}, 13
    v_add_u32 v{pT0}, s10, v{vRW}
    ds_write_b128 v{pT0}, {vr(ACC,4)}
    ds_write_b128 v{pT0}, {vr(ACC+4,4)} offset:1024
    s_waitcnt lgkmcnt(0)
    s_barrier""")
    lsk = k.new('L_s2sk')
    k(f"s_cmp_eq_u32 s5, 0\ns_cbranch_scc0 {lsk}")
    for w in range(1, 4):
        k(f"ds_read_b128 {vr(OF+8*w,4)}, v{pT0} offset:{w*2048}\nds_read_b128 {vr(OF+8*w+4,4)}, v{pT0} offset:{w*2048+1024}")
    k("s_waitcnt lgkmcnt(0)")
    for t in range(2):
        a = ACC + 4*t
        k(f"""v_pk_add_f32 {vr(a,2)}, {vr(a,2)}, {vr(OF+8+4*t,2)}
        v_pk_add_f32 {vr(a+2,2)}, {vr(a+2,2)}, {vr(OF+8+4*t+2,2)}
        v_pk_add_f32 {vr(OF+16+4*t,2)}, {vr(OF+16+4*t,2)}, {vr(OF+24+4*t,2)}
        v_pk_add_f32 {vr(OF+16+4*t+2,2)}, {vr(OF+16+4*t+2,2)}, {vr(OF+24+4*t+2,2)}""")
    for i in range(4):
        for t in range(2):
            k(f"v_add_f32 v{OUTR+2*i+t}, v{ACC+4*t+i}, v{OF+16+4*t+i}")
    k(f"""global_store_dwordx4 v{vOUT}, {vr(OUTR,4)}, s[{sOUT}:{sOUT+1}]
    global_store_dwordx4 v{vOUT}, {vr(OUTR+4,4)}, s[{sOUT}:{sOUT+1}] offset:16
    {lsk}:""")
    add64(k, sO2, sO2, 262144); add64(k, sOUT, sOUT, 32*5120)
    k(f"""s_xor_b32 s{sPAR2}, s{sPAR2}, 1
    s_add_u32 s{sPS}, s{sPS}, 1
    s_cmp_lt_u32 s{sPS}, {NSEG}
    s_cbranch_scc1 L_s2_loop
    s_waitcnt vmcnt(0)
    s_endpgm""")
```

```python
import sys; sys.path.insert(0, 'gen')
import common
from common import *
import rec2, proj, s1, s2, bpart

HEADER = open('concat_heads__memory_aug_recurrent_mem_tr__ssm_conv_s5__prompt.s.ref').read().split('; Override launch geometry')[0]

def gen(cfg):
    k = K()
    prologue(k)
    LDS = max(rec2.REC_LDS, proj.PROJ_LDS, s1.S1_LDS, s2.S2_LDS)
    only = cfg.get('only')
    k(f"""s_cmp_lt_u32 s3, 2
    s_cbranch_scc1 L_rec
    s_cmp_eq_u32 s3, 2
    s_cbranch_scc1 L_kp
    s_cmp_eq_u32 s3, 3
    s_cbranch_scc1 L_vp
    s_cmp_eq_u32 s3, 4
    s_cbranch_scc1 L_s1
    s_cmp_eq_u32 s3, 5
    s_cbranch_scc1 L_qp
    s_sub_u32 s{s2.sSIG}, s3, 6
    s_mov_b32 s{s2.sBETA}, s4
    s_cmp_lt_u32 s4, 20
    s_cbranch_scc1 L_s2
    s_mul_i32 s10, s{s2.sSIG}, 12
    s_add_u32 s10, s10, s4
    s_sub_u32 s{bpart.sBID}, s10, 20
    s_cmp_lt_u32 s{bpart.sBID}, 20
    s_cbranch_scc1 L_b1""")
    signal_init(k, 5, 6)
    k("s_branch L_end")
    c = dict(cfg); c['total_init'] = 256
    rec2.rec_role(k, c)
    proj.proj_role(k, 'K', c)
    proj.proj_role(k, 'V', c)
    proj.proj_role(k, 'Q', c)
    s1.s1_role(k, c)
    s2.s2_role(k, c)
    bpart.b1_role(k, c)
    bpart.b2_role(k, c)
    epilogue(k)
    return wrap(k.text(cfg.get('verbose', False)), 256, LDS, header=HEADER + "; Launch geometry: one persistent workgroup per CU (roles are taken from XCC id + ticket).\n"), LDS

DEFAULT = dict(par=0, v_at=21, dma_late=1, rs_delay=256, stamps=0, vstamp=84, st=[])
if __name__ == '__main__':
    cfg = dict(DEFAULT, verbose=True)
    text, lds = gen(cfg)
    open('full.s', 'w').write(text)
    print(len(text), 'bytes', text.count('\n'), 'lines', 'lds', lds)
```
